```python
import torch

def _softmax(x, axis=-1):
    return torch.softmax(x, dim=axis)
def _gelu(x):
    return torch.nn.functional.gelu(x, approximate="tanh")
def _silu(x):
    return torch.nn.functional.silu(x)
def _sigmoid(x):
    return torch.sigmoid(x)
def _layernorm(x, axis=-1, eps=1e-5):
    m = x.mean(dim=axis, keepdim=True)
    v = x.var(dim=axis, keepdim=True, unbiased=False)
    return (x - m) / torch.sqrt(v + eps)
def _scatter_add(tgt, idx, src, axis=0):
    return tgt.clone().index_add_(axis, idx, src)
def _segment_sum(src, seg, n):
    out = torch.zeros((n,) + src.shape[1:], dtype=src.dtype)
    return out.index_add_(0, seg, src)
def _pad(x, pw):
    flat = tuple(v for pair in reversed(pw) for v in pair)
    return torch.nn.functional.pad(x, flat)

kernel_name = 'interleave_layers__sliding_local_dilated__glu_gated_geglu__prompt'

def setup_inputs():

    _w = (lambda a: (lambda t: t.to(torch.bfloat16) if t.is_floating_point() else t)(torch.as_tensor(a)))
    def _A_setup():
        B, S, D = 1, 2048, 512
        return {
            "x": _w((lambda *s: torch.randn(*s, dtype=torch.bfloat16) * 0.05)(B, S, D)),
            "wqkv": _w((lambda *s: torch.randn(*s, dtype=torch.bfloat16) * 0.05)(D, 3 * D)),
            "wo": _w((lambda *s: torch.randn(*s, dtype=torch.bfloat16) * 0.05)(D, D)),
        }
    _A_in = _A_setup()

    def _B_setup():
        B, S, Dm, Df = 1, 2048, 512, 1792
        return {
            "x": _w((lambda *s: torch.randn(*s, dtype=torch.bfloat16) * 0.05)(B, S, Dm)),
            "w_gate": _w((lambda *s: torch.randn(*s, dtype=torch.bfloat16) * 0.8)(Dm, Df) * (Dm ** -0.5)),
            "w_up": _w((lambda *s: torch.randn(*s, dtype=torch.bfloat16) * 0.8)(Dm, Df) * (Dm ** -0.5)),
            "w_down": _w((lambda *s: torch.randn(*s, dtype=torch.bfloat16) * 0.8)(Df, Dm) * (Df ** -0.5)),
        }
    _B_in = _B_setup()

    return {
        "A_x": _A_in["x"],
        "A_wqkv": _A_in["wqkv"],
        "A_wo": _A_in["wo"],
        "B_x": _B_in["x"],
        "B_w_gate": _B_in["w_gate"],
        "B_w_up": _B_in["w_up"],
        "B_w_down": _B_in["w_down"],
    }

def reference(A_x, A_wqkv, A_wo, B_x, B_w_gate, B_w_up, B_w_down):
    def _A_ref(x, wqkv, wo):
        B, S, D = x.shape
        H = 32; Dh = D // H
        W, dil = 8, 2
        qkv = (lambda x, *d: x.permute(*d))((x @ wqkv).reshape(B, S, 3, H, Dh), 2, 0, 3, 1, 4)
        q, k, v = qkv[0], qkv[1], qkv[2]
        scale = Dh ** -0.5
        pos = torch.arange(S)
        off = torch.arange(W) * dil
        idx = pos[:, None] - off[None, :]
        mask = idx >= 0
        idx_c = torch.where(mask, idx, 0).reshape(-1)
        kg = k[:, :, idx_c, :].reshape(B, H, S, W, Dh)
        vg = v[:, :, idx_c, :].reshape(B, H, S, W, Dh)
        logits = torch.einsum("bhsd,bhswd->bhsw", q, kg) * scale
        logits = torch.where(mask[None, None, :, :], logits, -1e9)
        attn = _softmax(logits, axis=-1)
        o = torch.einsum("bhsw,bhswd->bhsd", attn, vg)
        return (lambda x, *d: x.permute(*d))(o, 0, 2, 1, 3).reshape(B, S, D) @ wo

    def _B_ref(x, w_gate, w_up, w_down):
        g = torch.einsum("bsd,df->bsf", x, w_gate)
        u = torch.einsum("bsd,df->bsf", x, w_up)
        h = _gelu(g) * u
        return torch.einsum("bsf,fd->bsd", h, w_down)

    x = A_x
    x = x + _A_ref(_layernorm(x, axis=-1), A_wqkv, A_wo)
    x = x + _B_ref(_layernorm(x, axis=-1), B_w_gate, B_w_up, B_w_down)
    x = x + _A_ref(_layernorm(x, axis=-1), A_wqkv, A_wo)
    x = x + _B_ref(_layernorm(x, axis=-1), B_w_gate, B_w_up, B_w_down)
    return x
```

```python
class Asm:
    def __init__(self):
        self.lines = []
        self.uid = 0
    def __call__(self, s=""):
        for l in s.split("\n"):
            self.lines.append(l)
    def e(self, fmt, *a):
        self.lines.append("    " + (fmt % a if a else fmt))
    def label(self, name):
        self.lines.append(name + ":")
    def newlabel(self, base="L"):
        self.uid += 1
        return "%s_%d" % (base, self.uid)
    def text(self):
        return "\n".join(self.lines) + "\n"

def _r(p, n, c):
    if c == 1:
        return "%s%d" % (p, n)
    return "%s[%d:%d]" % (p, n, n + c - 1)
def v(n, c=1): return _r("v", n, c)
def s(n, c=1): return _r("s", n, c)
def a(n, c=1): return _r("a", n, c)

def kernel_header(A, name):
    A(".text")
    A(".globl %s" % name)
    A(".p2align 8")
    A(".type %s,@function" % name)
    A("%s:" % name)

def kernel_desc(A, name, vgpr=256, sgpr=102, accum=256):
    A('.section .rodata,"a"')
    A(".p2align 6")
    A(".amdhsa_kernel %s" % name)
    A("  .amdhsa_next_free_vgpr %d" % vgpr)
    A("  .amdhsa_next_free_sgpr %d" % sgpr)
    A("  .amdhsa_accum_offset %d" % accum)
    A("  .amdhsa_group_segment_fixed_size 0")
    A("  .amdhsa_kernarg_size 80")
    A("  .amdhsa_user_sgpr_count 2")
    A("  .amdhsa_user_sgpr_kernarg_segment_ptr 1")
    A("  .amdhsa_system_sgpr_workgroup_id_x 1")
    A(".end_amdhsa_kernel")

def srd(A, d, base, nbytes):
    A.e("s_mov_b32 s%d, s%d", d, base)
    A.e("s_and_b32 s%d, s%d, 0xffff", d + 1, base + 1)
    A.e("s_mov_b32 s%d, 0x%x", d + 2, nbytes)
    A.e("s_mov_b32 s%d, 0x20000", d + 3)
```

```python
import re
REG = re.compile(r'\b([vas])(\d+)\b|\b([vas])\[(\d+):(\d+)\]')
def regs(tok):
    out = set()
    for m in REG.finditer(tok):
        if m.group(1): out.add((m.group(1), int(m.group(2))))
        else:
            for i in range(int(m.group(4)), int(m.group(5)) + 1): out.add((m.group(3), i))
    if re.search(r'\bvcc\b', tok): out |= {('s', 'vcc')}
    if re.search(r'\bm0\b', tok): out |= {('s', 'm0')}
    if re.search(r'\bexec\b', tok): out |= {('s', 'exec')}
    return out
TRANS = ('v_exp_f32', 'v_log_f32', 'v_rcp_f32', 'v_rsq_f32', 'v_sqrt_f32', 'v_sin_f32', 'v_cos_f32')
class I:
    def __init__(s, line, ln):
        s.line = line; s.ln = ln
        t = line.split(';')[0].strip()
        p = t.split(None, 1)
        s.op = p[0]; rest = p[1] if len(p) > 1 else ''
        ops = [x.strip() for x in re.split(r',(?![^\[]*\])', rest)]
        s.ops = ops
        op = s.op
        s.mfma = op.startswith('v_mfma')
        s.valu = op.startswith('v_') and not s.mfma
        s.trans = op.replace('_e32', '').replace('_e64', '') in TRANS
        s.dot = op.startswith('v_dot')
        s.vmem = op.startswith('buffer_') or op.startswith('global_')
        s.ds = op.startswith('ds_')
        s.salu = op.startswith('s_')
        s.w = set(); s.r = set(); s.srcc = set(); s.ab = set()
        s.nop = 1
        if op == 's_nop': s.nop = int(ops[0], 0) + 1
        if s.mfma:
            s.w = regs(ops[0]); s.ab = regs(ops[1]) | regs(ops[2]); s.srcc = regs(ops[3]); s.r = s.ab | s.srcc
            s.passes = 8 if '32x32x16' in op else 4
        elif s.valu:
            if op.startswith('v_cmp'):
                s.w = regs(ops[0]); s.r = set().union(*[regs(o) for o in ops[1:]])
            elif op.startswith('v_permlane'):
                s.w = regs(ops[0]) | regs(ops[1]); s.r = set(s.w)
            elif op.startswith('v_readfirstlane') or op.startswith('v_readlane'):
                s.w = regs(ops[0]); s.r = regs(ops[1])
            else:
                s.w = regs(ops[0]); s.r = set().union(*[regs(o) for o in ops[1:]]) if len(ops) > 1 else set()
                if op.startswith('v_fmac') or op.startswith('v_dot2c'): s.r |= s.w
                if op.startswith('v_cndmask') and len(ops) == 3: s.r |= {('s', 'vcc')}
        elif s.vmem:
            lds = ' lds' in t
            if 'load' in op:
                if lds: s.r = set().union(*[regs(o) for o in ops]) | {('s', 'm0')}
                else: s.w = regs(ops[0]); s.r = set().union(*[regs(o) for o in ops[1:]])
            else:
                s.r = set().union(*[regs(o) for o in ops])
                s.data = regs(ops[0]) if op.startswith('buffer') else regs(ops[1])
                if 'atomic' in op and ' sc0' in t: s.w = regs(ops[0])
            s.lds = lds
        elif s.ds:
            if 'read' in op or 'permute' in op or 'swizzle' in op:
                s.w = regs(ops[0]); s.r = set().union(*[regs(o) for o in ops[1:]])
            else:
                s.r = set().union(*[regs(o) for o in ops])
        elif s.salu:
            if op.startswith('s_cmp') or op.startswith('s_cbranch') or op in ('s_waitcnt', 's_barrier', 's_nop', 's_branch', 's_endpgm', 's_sleep', 's_setprio'):
                s.r = set().union(*[regs(o) for o in ops]) if ops else set()
            else:
                s.w = regs(ops[0]); s.r = set().union(*[regs(o) for o in ops[1:]]) if len(ops) > 1 else set()
def vg(x): return {r for r in x if r[0] in 'va'}
def sg(x): return {r for r in x if r[0] == 's'}
def check(text):
    ins = []
    for ln, l in enumerate(text.split('\n'), 1):
        t = l.split(';')[0].strip()
        if not t or t.endswith(':') or t.startswith('.'): continue
        ins.append(I(t, ln))
    errs = []
    n = len(ins)
    for i, p in enumerate(ins):
        dist = 0
        for j in range(i + 1, min(n, i + 24)):
            c = ins[j]
            need = 0; why = ''
            if p.valu and not p.dot and c.mfma and vg(p.w) & c.r: need, why = 2, 'valu->mfma'
            if p.mfma:
                big = 12 if p.passes == 8 else 8
                if c.mfma:
                    if p.w & c.ab: need, why = big, 'mfma D->A/B'
                    elif p.w & c.srcc and (p.w != c.srcc or p.passes != c.passes): need, why = big - 2, 'mfma D->C overlap'
                    elif p.w & c.w and p.w != c.srcc: need, why = max(need, big - 2), 'mfma WAW'
                elif (c.valu or c.vmem or c.ds) and p.w & (c.r | c.w): need, why = big, 'mfma D->valu/mem'
                if c.valu and p.srcc & c.w and not (p.w & c.w): need, why = max(need, 7 if p.passes == 8 else 3), 'mfma C WAR'
            if p.trans and c.valu and not c.trans and p.w & c.r: need, why = max(need, 1), 'trans->valu'
            if p.trans and (c.mfma) and p.w & c.r: need = max(need, 2)
            if p.dot and (c.valu or c.mfma or c.vmem or c.ds) and vg(p.w) & (c.r | c.w) and not (c.dot and c.op == p.op and not (vg(p.w) & (regs(c.ops[1]) | regs(c.ops[2])))): need, why = max(need, 3), 'dot->other'
            if p.valu and c.op.startswith('v_permlane') and vg(p.w) & c.r: need, why = max(need, 2), 'valu->permlane'
            if p.valu and '_dpp' in c.op and vg(p.w) & c.r: need, why = max(need, 2), 'valu->dpp'
            if p.valu and (c.op.startswith('v_readfirstlane') or c.op.startswith('v_readlane')) and vg(p.w) & c.r: need, why = max(need, 1), 'valu->readlane'
            if p.valu and sg(p.w) and c.valu and sg(p.w) & c.r: need, why = max(need, 2), 'valu sgpr->valu'
            if p.valu and sg(p.w) and c.vmem and sg(p.w) & c.r: need, why = max(need, 5), 'valu sgpr->vmem'
            if p.salu and ('s', 'm0') in p.w and c.vmem and getattr(c, 'lds', False): need, why = max(need, 1), 'm0->dma'
            if p.vmem and hasattr(p, 'data') and ('x4' in p.op or 'x3' in p.op) and (c.w & p.data): need, why = max(need, 2 if c.valu else 1), 'store data WAR'
            if p.op.startswith('ds_write_b128') and False: pass
            if need > dist:
                errs.append('line %d -> %d (%s): need %d have %d\n   %s\n   %s' % (p.ln, c.ln, why, need, dist, p.line, c.line))
            dist += c.nop
            if dist >= 20: break
    return errs
if __name__ == '__main__':
    import sys
    e = check(open(sys.argv[1]).read())
    print('\n'.join(e) if e else 'no hazards found')
```

```python
import sys, struct
from asmlib import Asm, v, s, a, kernel_header, kernel_desc
import hazard

NAME = "interleave_layers__sliding_local_dilated__glu_gated_geglu__prompt"
MB = 1 << 20
CNT_OFF = 0
WP_OFF = 1 * MB
AUG_OFF = 5 * MB
O_OFF = 6 * MB
X1_OFF = 10 * MB
X2_OFF = 14 * MB
H_OFF = 16 * MB
ST1_OFF = 32 * MB
ST2_OFF = 33 * MB
STAMP_OFF = 40 * MB
WS_BYTES = 256 * MB
OOB = 0x80000000
CA, CB, CC, CD, CE, CR = 0, 64, 128, 160, 192, 224
AUX = 131072
AUGL = AUX + 16384
P1W = 81920
P1ST = 155648
P0L = 65536

def f32(x): return struct.unpack("<I", struct.pack("<f", x))[0]

class K(Asm):
    def __init__(self, opts):
        super().__init__()
        self.o = opts
        self.lgq = []
        self.vmq = []
        self.nstamp = 0
    def ds(self, tag, fmt, *a_):
        self.e(fmt, *a_); self.lgq.append(tag)
    def lg(self, *tags):
        idx = max((i for i, t in enumerate(self.lgq) if t in tags), default=-1)
        if idx < 0: return
        n = len(self.lgq) - 1 - idx
        self.e("s_waitcnt lgkmcnt(%d)", min(n, 15))
        self.lgq = self.lgq[idx + 1:] if n <= 15 else self.lgq[len(self.lgq) - 15:]
    def lg0(self):
        self.e("s_waitcnt lgkmcnt(0)"); self.lgq = []
    def vm(self, tag, fmt, *a_):
        self.e(fmt, *a_); self.vmq.append(tag)
    def vmark(self, tag):
        self.vmq.append(("mark", tag))
    def vw(self, *tags):
        idx = max((i for i, t in enumerate(self.vmq) if t in tags or (isinstance(t, tuple) and t[0] == "mark" and t[1] in tags)), default=-1)
        if idx < 0: return
        n = sum(1 for t in self.vmq[idx + 1:] if not (isinstance(t, tuple) and t[0] == "mark"))
        if n <= 63:
            self.e("s_waitcnt vmcnt(%d)", n)
            self.vmq = self.vmq[idx + 1:]
        else:
            self.e("s_waitcnt vmcnt(63)")
    def vcount(self, tag):
        idx = max(i for i, t in enumerate(self.vmq) if isinstance(t, tuple) and t[0] == "mark" and t[1] == tag)
        return sum(1 for t in self.vmq[idx + 1:] if not (isinstance(t, tuple) and t[0] == "mark"))
    def vw0(self):
        self.e("s_waitcnt vmcnt(0)"); self.vmq = []
    def stamp(self, k):
        if not self.o.get("stamps"): return
        self.e("s_memrealtime s[%d:%d]", S["t0"], S["t0"] + 1)
        self.e("s_waitcnt lgkmcnt(0)"); self.lgq = []
        self.e("s_add_u32 s%d, s%d, %d", S["t2"], S["stb"], k)
        self.e("s_mov_b32 m0, s%d", S["t2"])
        self.e("v_writelane_b32 v%d, s%d, m0", V["stamp"], S["t0"])

S = {}
def salloc():
    n = 24
    for nm in ("WS", "WQKV", "WO", "WD", "XS", "OUT", "RF", "DBG"):
        S[nm] = n; n += 4
    for nm in ("par", "own0", "own1", "t0"):
        S[nm] = n; n += 2
    for nm in ("t2", "t3", "t4", "t5", "w", "m64", "c8", "M128", "s16", "pass", "th", "kh",
               "sH", "sC", "xg0", "xg1", "xg2", "xl0", "xl1", "xl2", "p1wm", "p1ws",
               "gwm", "rfs", "rfp", "rfc", "prev", "cur", "b", "hst", "out0", "out1", "spin", "stb", "item"):
        S[nm] = n; n += 1
    assert n <= 102, n
salloc()
V = dict(tid=0, lane=1, l16=2, xf64=3, xf224=4, p1wd=5, p1wr=6, p1wr2=7, p1xd=8, xb0=9, xb1=10,
         gwdA=11, gwdB=12, gwr0=13, gwr1=14, gwr0h=15, gwr1h=16, vo=17, vout=18, st32=19, st3=20, st1=21,
         mP0=22, mO0=23, mP1=24, mO1=25, res=26, csQ=34, csK=38, csV=42, ones=46,
         rfA=50, rfB=51, wcur=52, wnxt=53, augr=54, stamp=55, raw=56, pa=72, pb=73, one=74, zero=75)
W0 = 76
def sr(n): return "s[%d:%d]" % (S[n], S[n] + 3)
def sp(n): return "s[%d:%d]" % (S[n], S[n] + 1)
def ss(n): return "s%d" % S[n]
def vv(n, c=1, o=0): return v(V[n] + o, c)

def mk_srd(k, name, base, nbytes, add=0):
    d = S[name]
    if add:
        k.e("s_add_u32 s%d, s%d, 0x%x", d, base, add)
        k.e("s_addc_u32 s%d, s%d, 0", d + 1, base + 1)
        k.e("s_and_b32 s%d, s%d, 0xffff", d + 1, d + 1)
    else:
        k.e("s_mov_b32 s%d, s%d", d, base)
        k.e("s_and_b32 s%d, s%d, 0xffff", d + 1, base + 1)
    k.e("s_mov_b32 s%d, 0x%x", d + 2, nbytes)
    k.e("s_mov_b32 s%d, 0x20000", d + 3)

def signal(k, line_expr_emit):
    L = k.newlabel("L_sig")
    k.e("s_cmp_lg_u32 %s, 0", ss("w"))
    k.e("s_cbranch_scc1 %s", L)
    line_expr_emit()
    k.e("s_mov_b64 exec, 1")
    k.e("buffer_atomic_add %s, %s, %s, %s offen sc1", vv("one"), vv("zero"), sr("WS"), ss("t2"))
    k.e("s_mov_b64 exec, -1")
    k.label(L)

def cnt_off(k, base_line, idx_s, per_pass=0, dst="t2"):
    if per_pass:
        k.e("s_mul_i32 %s, %s, %d", ss(dst), ss("pass"), per_pass)
        k.e("s_add_u32 %s, %s, %s", ss(dst), ss(dst), idx_s)
        k.e("s_add_u32 %s, %s, %d", ss(dst), ss(dst), base_line)
    else:
        k.e("s_add_u32 %s, %s, %d", ss(dst), idx_s, base_line)
    k.e("s_lshl_b32 %s, %s, 7", ss(dst), ss(dst))

def poll_issue(k, nl):
    k.e("s_mov_b64 exec, %d", (1 << nl) - 1)
    k.e("v_mov_b32 %s, 0", vv("pb"))
    k.e("buffer_atomic_add %s, %s, %s, 0 offen sc0 sc1", vv("pb"), vv("pa"), sr("WS"))
    k.e("s_mov_b64 exec, -1")

def poll_spin(k, nl, target, code, first_wait=None):
    Ll = k.newlabel("L_poll"); Ld = k.newlabel("L_polld"); Lc = k.newlabel("L_pollc")
    k.e("s_mov_b64 exec, %d", (1 << nl) - 1)
    k.e("s_mov_b32 %s, 0", ss("spin"))
    if first_wait is not None:
        k.e("s_waitcnt vmcnt(%d)", min(first_wait, 63))
        k.e("s_branch %s", Lc)
    k.label(Ll)
    k.e("v_mov_b32 %s, 0", vv("pb"))
    k.e("buffer_atomic_add %s, %s, %s, 0 offen sc0 sc1", vv("pb"), vv("pa"), sr("WS"))
    k.e("s_waitcnt vmcnt(0)")
    k.label(Lc)
    k.e("v_cmp_ne_u32 vcc, %d, %s", target, vv("pb"))
    k.e("s_cbranch_vccz %s", Ld)
    k.e("s_add_u32 %s, %s, 1", ss("spin"), ss("spin"))
    k.e("s_cmp_lt_u32 %s, 0x4000", ss("spin"))
    k.e("s_cbranch_scc1 %s", Ll)
    k.e("v_mov_b32 %s, %d", vv("pb"), code)
    k.e("buffer_store_dword %s, %s, %s, 0 offen offset:4", vv("pb"), vv("zero"), sr("DBG"))
    k.label(Ld)
    k.e("s_mov_b64 exec, -1")

def wave1(k, body):
    L = k.newlabel("L_w1")
    k.e("s_cmp_lg_u32 %s, 1", ss("w"))
    k.e("s_cbranch_scc1 %s", L)
    body()
    k.label(L)

def pa_two(k, sA, sB):
    k.e("v_mov_b32 %s, %s", vv("pa"), sB)
    k.e("v_writelane_b32 %s, %s, 0", vv("pa"), sA)

def setup(k):
    k.e("s_cmp_ge_u32 s2, 256")
    k.e("s_cbranch_scc1 L_end")
    k.e("s_load_dwordx16 s[4:19], s[0:1], 0")
    k.e("s_load_dwordx4 s[20:23], s[0:1], 64")
    L = vv("lane"); T = W0
    k.e("v_and_b32 %s, 63, v0", L)
    k.e("v_lshrrev_b32 v%d, 6, v0", T)
    k.e("v_lshlrev_b32 %s, 4, %s", vv("l16"), L)
    k.e("v_readfirstlane_b32 %s, v%d", ss("w"), T)
    k.e("s_and_b32 %s, s2, 7", ss("t2"))
    k.e("s_lshr_b32 %s, s2, 3", ss("t3"))
    k.e("s_and_b32 %s, %s, 7", ss("c8"), ss("t3"))
    k.e("s_and_b32 %s, %s, 15", ss("s16"), ss("t3"))
    k.e("s_lshr_b32 %s, %s, 3", ss("t4"), ss("t3"))
    k.e("s_lshl_b32 %s, %s, 2", ss("m64"), ss("t2"))
    k.e("s_add_u32 %s, %s, %s", ss("m64"), ss("m64"), ss("t4"))
    k.e("s_lshr_b32 %s, %s, 1", ss("M128"), ss("m64"))
    k.e("s_mov_b32 %s, s2", ss("item"))
    k.e("s_mov_b32 %s, 0", ss("pass"))
    k.e("s_mov_b32 %s, 0", ss("stb"))
    k.e("s_and_b32 %s, %s, 1", ss("th"), ss("w"))
    k.e("s_lshr_b32 %s, %s, 1", ss("kh"), ss("w"))
    k.e("v_mov_b32 %s, 1", vv("one"))
    k.e("v_mov_b32 %s, 0", vv("zero"))
    k.e("v_mov_b32 %s, 0", vv("stamp"))
    k.e("v_mov_b32 %s, 0", vv("pa"))
    t16, g, t32, hh, u, p16, r, c = (T + i for i in range(8))
    x, y, z = T + 8, T + 9, T + 10
    k.e("v_and_b32 v%d, 15, %s", t16, L)
    k.e("v_lshrrev_b32 v%d, 4, %s", g, L)
    k.e("v_and_b32 v%d, 31, %s", t32, L)
    k.e("v_lshrrev_b32 v%d, 5, %s", hh, L)
    k.e("v_lshrrev_b32 v%d, 3, %s", u, L)
    k.e("v_and_b32 v%d, 7, %s", p16, L)
    k.e("v_bfe_u32 v%d, %s, 2, 2", r, L)
    k.e("v_and_b32 v%d, 3, %s", c, L)
    k.e("v_and_b32 v%d, 3, v%d", x, u)
    k.e("v_lshl_add_u32 v%d, v%d, 3, v%d", x, hh, x)
    k.e("v_mul_u32_u24 v%d, 3072, v%d", x, x)
    k.e("v_lshrrev_b32 v%d, 1, v%d", y, p16)
    k.e("v_xor_b32 v%d, v%d, v%d", y, y, g)
    k.e("v_lshl_add_u32 v%d, v%d, 5, v%d", x, y, x)
    k.e("v_and_b32 v%d, 1, %s", y, L)
    k.e("v_lshl_add_u32 v%d, v%d, 4, v%d", x, y, x)
    k.e("s_lshl_b32 %s, %s, 7", ss("t2"), ss("c8"))
    k.e("v_add_u32 %s, %s, v%d", vv("p1wd"), ss("t2"), x)
    k.e("s_lshl_b32 %s, %s, 2", ss("t3"), ss("th"))
    k.e("v_xor_b32 v%d, v%d, v%d", y, p16, g)
    k.e("v_xor_b32 v%d, %s, v%d", y, ss("t3"), y)
    k.e("v_lshlrev_b32 v%d, 10, v%d", x, u)
    k.e("v_lshl_add_u32 %s, v%d, 4, v%d", vv("p1xd"), y, x)
    k.e("s_mul_i32 %s, %s, 49152", ss("p1ws"), ss("w"))
    k.e("s_mul_i32 %s, %s, 6144", ss("p1wm"), ss("w"))
    k.e("s_add_u32 %s, %s, %d", ss("p1wm"), ss("p1wm"), P1W)
    k.e("s_waitcnt lgkmcnt(0)")
    mk_srd(k, "WQKV", 6, 512 * 1536 * 2)
    mk_srd(k, "XS", 4, 2 * MB)
    mk_srd(k, "WS", 22, WS_BYTES)
    mk_srd(k, "DBG", 20, 256)
    return (t16, g, t32, hh, u, p16, r, c, x, y, z)

def setup2(k, f):
    t16, g, t32, hh, u, p16, r, c, x, y, z = f
    L = vv("lane")
    mk_srd(k, "WO", 8, 512 * 512 * 2)
    mk_srd(k, "WD", 16, 1792 * 512 * 2)
    mk_srd(k, "OUT", 22, 2 * MB, add=X2_OFF)
    k.e("v_lshlrev_b32 v%d, 4, v%d", x, t16)
    k.e("v_lshl_add_u32 v%d, v%d, 8, v%d", x, hh, x)
    k.e("v_and_b32 v%d, 1, v%d", y, g)
    k.e("v_lshl_add_u32 %s, v%d, 14, v%d", vv("xf64"), y, x)
    k.e("v_mul_u32_u24 v%d, 57344, v%d", z, y)
    k.e("v_add_u32 %s, v%d, v%d", vv("xf224"), z, x)
    k.e("v_mov_b32 %s, %s", vv("vout"), vv("xf64"))
    k.e("v_mov_b32 %s, %s", vv("vo"), vv("xf64"))
    k.e("v_lshl_add_u32 v%d, v%d, 2, v%d", z, y, r)
    k.e("v_lshrrev_b32 v%d, 1, v%d", x, z)
    k.e("v_xor_b32 v%d, %s, v%d", x, ss("w"), x)
    k.e("v_lshlrev_b32 v%d, 5, v%d", x, x)
    k.e("v_lshl_add_u32 v%d, v%d, 7, v%d", x, z, x)
    k.e("v_lshl_add_u32 v%d, v%d, 3, v%d", x, c, x)
    k.e("v_mul_u32_u24 v%d, 6144, v%d", z, hh)
    k.e("v_add_u32 v%d, v%d, v%d", x, z, x)
    k.e("v_add_u32 %s, 0x%x, v%d", vv("p1wr"), P1W, x)
    k.e("v_add_u32 %s, 0x%x, v%d", vv("p1wr2"), P1W + 49152, x)
    k.e("v_lshrrev_b32 v%d, 1, v%d", x, t16)
    k.e("v_xor_b32 v%d, v%d, v%d", x, x, g)
    k.e("v_lshlrev_b32 v%d, 4, v%d", x, x)
    k.e("v_lshl_add_u32 %s, v%d, 7, v%d", vv("xb0"), t16, x)
    k.e("v_xor_b32 %s, 64, %s", vv("xb1"), vv("xb0"))
    k.e("v_and_b32 v%d, 1, v%d", x, g)
    k.e("v_lshlrev_b32 v%d, 1, v%d", x, x)
    k.e("v_lshrrev_b32 v%d, 1, v%d", y, p16)
    k.e("v_xor_b32 v%d, v%d, v%d", x, x, y)
    k.e("v_lshlrev_b32 v%d, 5, v%d", x, x)
    k.e("v_lshl_add_u32 v%d, v%d, 10, v%d", x, u, x)
    k.e("v_and_b32 v%d, 1, %s", y, L)
    k.e("v_lshl_add_u32 v%d, v%d, 4, v%d", x, y, x)
    k.e("s_lshl_b32 %s, %s, 7", ss("t2"), ss("c8"))
    k.e("v_add_u32 %s, %s, v%d", vv("gwdA"), ss("t2"), x)
    k.e("v_add_u32 %s, 7168, %s", vv("gwdB"), vv("gwdA"))
    k.e("v_lshrrev_b32 v%d, 1, v%d", x, r)
    k.e("v_xor_b32 v%d, %s, v%d", x, ss("kh"), x)
    k.e("v_and_b32 v%d, 1, v%d", y, g)
    k.e("v_lshl_add_u32 v%d, v%d, 1, v%d", x, x, y)
    k.e("v_lshlrev_b32 v%d, 5, v%d", x, x)
    k.e("v_lshl_add_u32 v%d, v%d, 3, v%d", y, hh, r)
    k.e("v_lshl_add_u32 v%d, v%d, 7, v%d", x, y, x)
    k.e("v_and_b32 v%d, 1, v%d", y, c)
    k.e("v_lshl_add_u32 v%d, v%d, 4, v%d", x, y, x)
    k.e("v_lshrrev_b32 v%d, 1, v%d", y, c)
    k.e("v_lshl_add_u32 v%d, v%d, 3, v%d", x, y, x)
    k.e("s_lshl_b32 %s, %s, 14", ss("t2"), ss("kh"))
    k.e("v_add_u32 %s, %s, v%d", vv("gwr0"), ss("t2"), x)
    k.e("v_xor_b32 %s, 64, %s", vv("gwr1"), vv("gwr0"))
    k.e("v_add_u32 %s, 0x10000, %s", vv("gwr0h"), vv("gwr0"))
    k.e("v_add_u32 %s, 0x10000, %s", vv("gwr1h"), vv("gwr1"))
    k.e("s_lshl_b32 %s, %s, 13", ss("gwm"), ss("w"))
    k.e("v_lshlrev_b32 %s, 3, v%d", vv("st32"), t32)
    k.e("v_lshl_add_u32 %s, v%d, 17, %s", vv("st3"), hh, vv("st32"))
    k.e("v_lshlrev_b32 v%d, 3, v%d", x, t16)
    k.e("v_lshl_add_u32 %s, v%d, 14, v%d", vv("st1"), g, x)
    k.e("v_and_b32 v%d, 1, %s", x, L)
    k.e("v_cmp_eq_u32 %s, 1, v%d", sp("par"), x)
    k.e("v_lshl_add_u32 v%d, v%d, 2, v%d", y, g, x)
    k.e("v_cmp_le_u32 %s, v%d, v%d", sp("own0"), y, t16)
    k.e("v_add_u32 v%d, 2, v%d", y, y)
    k.e("v_cmp_le_u32 %s, v%d, v%d", sp("own1"), y, t16)
    k.e("v_mov_b32 v%d, 0xffff", x)
    k.e("v_mov_b32 v%d, 0xffff0000", y)
    k.e("v_cndmask_b32 v%d, v%d, v%d, %s", x, x, y, sp("par"))
    k.e("v_cndmask_b32 %s, v%d, 0, %s", vv("mP0"), x, sp("own0"))
    k.e("v_cndmask_b32 %s, 0, v%d, %s", vv("mO0"), x, sp("own0"))
    k.e("v_cndmask_b32 %s, v%d, 0, %s", vv("mP1"), x, sp("own1"))
    k.e("v_cndmask_b32 %s, 0, v%d, %s", vv("mO1"), x, sp("own1"))
    for i in range(4): k.e("v_mov_b32 %s, 0x3f803f80", vv("ones", 1, i))

def p1_wdma(k, chunk, slot, tag):
    out = []
    for rg in range(2):
        def hdr(rg=rg):
            k.e("s_add_u32 m0, %s, %d", ss("p1wm"), slot * 24576 + rg * 3072)
            k.e("s_add_u32 %s, %s, 0x%x", ss("t3"), ss("p1ws"), (64 * chunk + 4 * rg) * 3072)
        for seg in range(3):
            def ld(rg=rg, seg=seg, hdr=hdr):
                if seg == 0: hdr()
                k.vm(tag, "buffer_load_dwordx4 %s, %s, %s offen offset:%d lds", vv("p1wd"), sr("WQKV"), ss("t3"), seg * 1024)
            out.append(ld)
    return out

def p1_xsetup(k):
    k.e("s_lshl_b32 %s, %s, 16", ss("t2"), ss("m64"))
    k.e("s_sub_u32 %s, %s, 16384", ss("t2"), ss("t2"))
    k.e("s_mul_i32 %s, %s, %s", ss("t3"), ss("th"), ss("sH"))
    k.e("s_add_u32 %s, %s, %s", ss("t2"), ss("t2"), ss("t3"))
    k.e("s_lshl_b32 %s, %s, 14", ss("t3"), ss("kh"))
    k.e("s_add_u32 %s, %s, %s", ss("xg0"), ss("t2"), ss("t3"))
    k.e("s_add_u32 %s, %s, 32768", ss("xg1"), ss("xg0"))
    k.e("s_mul_i32 %s, %s, %s", ss("t3"), ss("kh"), ss("sC"))
    k.e("s_add_u32 %s, %s, %s", ss("xg2"), ss("t2"), ss("t3"))
    k.e("s_add_u32 %s, %s, 65536", ss("xg2"), ss("xg2"))
    k.e("s_or_b32 %s, %s, %s", ss("t3"), ss("m64"), ss("kh"))
    k.e("s_cmp_eq_u32 %s, 0", ss("t3"))
    k.e("s_cselect_b32 %s, 0x%x, %s", ss("xg0"), OOB, ss("xg0"))
    k.e("s_lshl_b32 %s, %s, 10", ss("xl0"), ss("w"))
    k.e("s_add_u32 %s, %s, 4096", ss("xl1"), ss("xl0"))
    k.e("s_mul_i32 %s, %s, 10240", ss("t3"), ss("kh"))
    k.e("s_lshl_b32 %s, %s, 10", ss("xl2"), ss("th"))
    k.e("s_add_u32 %s, %s, %s", ss("xl2"), ss("xl2"), ss("t3"))
    k.e("s_add_u32 %s, %s, 8192", ss("xl2"), ss("xl2"))

def p1_xdma(k):
    for p in range(4):
        for (gq, lq, cc) in (("xg0", "xl0", 0), ("xg1", "xl1", 0), ("xg2", "xl2", 0), ("xg0", "xl0", 1), ("xg1", "xl1", 1)):
            k.e("s_add_u32 m0, %s, %d", ss(lq), (2 * p + cc) * 10240)
            if gq == "xg2" and p > 0:
                k.e("s_add_u32 %s, %s, %s", ss(gq), ss(gq), ss("sC"))
                k.e("s_add_u32 %s, %s, %s", ss(gq), ss(gq), ss("sC"))
            elif gq != "xg2" and (p > 0 or cc > 0):
                k.e("s_add_u32 %s, %s, %s", ss(gq), ss(gq), ss("sC"))
            else:
                k.e("s_nop 0")
            k.vm("X%d" % p, "buffer_load_dwordx4 %s, %s, %s offen sc1 lds", vv("p1xd"), sr("XS"), ss(gq))

AQ, AK, AV = W0, W0 + 16, W0 + 36
XB, WB = W0 + 56, W0 + 96
P1T = W0 + 120
SA, SB = P1T, P1T + 10
STL = P1T

def red_g(k, regs_, tmp, op="v_add_f32"):
    for sw in ("v_permlane16_swap_b32", "v_permlane32_swap_b32"):
        for r_, t_ in zip(regs_, tmp): k.e("v_mov_b32 v%d, v%d", t_, r_)
        if len(regs_) < 3: k.e("s_nop %d", 2 - len(regs_))
        for r_, t_ in zip(regs_, tmp): k.e("%s v%d, v%d", sw, r_, t_)
        if len(regs_) < 2: k.e("s_nop 0")
        for r_, t_ in zip(regs_, tmp): k.e("%s v%d, v%d, v%d", op, r_, r_, t_)

def stats_finish(k, S_, SS_, mean, rstd, t):
    k.e("v_mul_f32 v%d, 0x%x, v%d", mean, f32(1 / 512), S_)
    k.e("v_mul_f32 v%d, v%d, v%d", t, mean, mean)
    k.e("v_mov_b32 v%d, 0x%x", rstd, f32(1 / 512))
    k.e("v_fma_f32 v%d, v%d, v%d, -v%d", t, SS_, rstd, t)
    k.e("v_max_f32 v%d, 0, v%d", t, t)
    k.e("v_add_f32 v%d, 0x%x, v%d", t, f32(1e-5), t)
    k.e("v_rsq_f32 v%d, v%d", rstd, t)

def p1_stats(k):
    L2 = k.newlabel("L_st2"); Lj = k.newlabel("L_stj")
    A_ = STL + 32
    k.e("s_cmp_lg_u32 %s, 0", ss("pass"))
    k.e("s_cbranch_scc1 %s", L2)
    save = list(k.lgq)
    b = STL + 40
    k.e("s_add_u32 %s, %s, 1", ss("t2"), ss("w"))
    k.e("s_lshl_b32 %s, %s, 11", ss("t2"), ss("t2"))
    k.e("v_add_u32 v%d, %s, %s", b, ss("t2"), vv("xb0"))
    k.e("v_add_u32 v%d, %s, %s", b + 1, ss("t2"), vv("xb1"))
    k.e("v_add_u32 v%d, 40960, v%d", b + 2, b)
    k.e("v_add_u32 v%d, 40960, v%d", b + 3, b + 1)
    k.e("v_add_u32 v%d, 40960, %s", b + 4, vv("xb0"))
    k.e("v_add_u32 v%d, 40960, %s", b + 5, vv("xb1"))
    for i in range(8): k.e("v_mov_b32 v%d, 0", A_ + (i if i < 4 else 10 + i))
    acc2 = A_ + 14
    items = [(blk, ks) for ks in range(16) for blk in (0, 1)]
    def rd(n):
        blk, ks = items[n]; c = ks >> 1; kk = ks & 1
        if blk == 0: base = "v%d" % (b + kk + (2 if c >= 4 else 0))
        else: base = ("v%d" % (b + 4 + kk)) if c >= 4 else vv("xb1" if kk else "xb0")
        k.ds(("st", n), "ds_read_b128 %s, %s offset:%d", v(STL + 4 * (n % 8), 4), base, (c % 4) * 10240)
    for n in range(6): rd(n)
    for n in range(32):
        if n + 6 < 32: rd(n + 6)
        k.lg(("st", n))
        blk = items[n][0]
        for j in range(4):
            x_ = STL + 4 * (n % 8) + j
            base = (A_ if j % 2 == 0 else acc2) + 2 * blk
            k.e("v_dot2c_f32_bf16 v%d, v%d, %s", base, x_, vv("ones"))
            k.e("v_dot2c_f32_bf16 v%d, v%d, v%d", base + 1, x_, x_)
    k.e("s_nop 2")
    for i in range(4): k.e("v_add_f32 v%d, v%d, v%d", A_ + i, A_ + i, acc2 + i)
    k.e("s_branch %s", Lj)
    k.label(L2)
    for blk in range(2):
        bb = STL + 8 * blk
        for j in range(2):
            k.e("v_add_f32 v%d, v%d, v%d", bb + j, bb + j, bb + 2 + j)
            k.e("v_add_f32 v%d, v%d, v%d", bb + 4 + j, bb + 4 + j, bb + 6 + j)
        for j in range(2):
            k.e("v_add_f32 v%d, v%d, v%d", A_ + 2 * blk + j, bb + j, bb + 4 + j)
    k.label(Lj)
    k.lgq = []
    red_g(k, [A_, A_ + 1, A_ + 2, A_ + 3], [STL, STL + 1, STL + 2, STL + 3])
    mo, mh = STL + 4, STL + 6
    stats_finish(k, A_, A_ + 1, mo, mo + 1, STL + 8)
    stats_finish(k, A_ + 2, A_ + 3, mh, mh + 1, STL + 9)
    Lz = k.newlabel("L_stz")
    k.e("s_cmp_lg_u32 %s, 0", ss("m64"))
    k.e("s_cbranch_scc1 %s", Lz)
    k.e("v_mov_b32 v%d, 0", mh)
    k.e("v_mov_b32 v%d, 0", mh + 1)
    k.label(Lz)
    k.e("v_and_b32 v%d, 15, %s", STL + 10, vv("lane"))
    k.e("s_add_u32 %s, %s, 1", ss("t2"), ss("w"))
    k.e("s_lshl_b32 %s, %s, 4", ss("t2"), ss("t2"))
    k.e("v_add_u32 v%d, %s, v%d", STL + 11, ss("t2"), STL + 10)
    k.e("v_lshlrev_b32 v%d, 3, v%d", STL + 12, STL + 10)
    k.e("v_lshlrev_b32 v%d, 3, v%d", STL + 13, STL + 11)
    k.e("v_lshlrev_b32 v%d, 2, v%d", STL + 10, STL + 10)
    k.e("v_lshlrev_b32 v%d, 2, v%d", STL + 11, STL + 11)
    for i in range(4): k.e("v_add_u32 v%d, 0x%x, v%d", STL + 10 + i, P1ST, STL + 10 + i)
    k.lgq = save
    k.ds("sw", "ds_write_b64 v%d, %s", STL + 13, v(mo, 2))
    k.ds("sw", "ds_write_b64 v%d, %s", STL + 12, v(mh, 2))
    k.ds("sw", "ds_write_b32 v%d, v%d offset:640", STL + 11, mo)
    k.ds("sw", "ds_write_b32 v%d, v%d offset:640", STL + 10, mh)
    k.ds("sw", "ds_write_b32 v%d, v%d offset:960", STL + 11, mo + 1)
    k.ds("sw", "ds_write_b32 v%d, v%d offset:960", STL + 10, mh + 1)

def g_wdma(k, srd, slot, soff_emit, tag):
    out = []
    for p in range(4):
        def l0(p=p):
            k.e("s_add_u32 m0, %s, %d", ss("gwm"), slot * 32768 + p * 2048)
            soff_emit(p)
            k.vm(tag, "buffer_load_dwordx4 %s, %s, %s offen lds", vv("gwdA"), sr(srd), ss("t3"))
        def l1():
            k.vm(tag, "buffer_load_dwordx4 %s, %s, %s offen offset:1024 lds", vv("gwdB"), sr(srd), ss("t3"))
        out += [l0, l1]
    return out

def p1_main(k):
    def reads(ks):
        c, kk, st = ks >> 1, ks & 1, ks & 1
        slot = c % 3
        wb = vv("p1wr2") if slot == 2 else vv("p1wr")
        so = 0 if slot == 2 else slot * 24576
        R = []
        def w(seg, q):
            R.append(lambda: k.ds(("W", ks, seg), "ds_read_b64_tr_b16 %s, %s offset:%d", v(WB + st * 12 + seg * 4 + 2 * q, 2), wb, so + kk * 12288 + q * 3072 + seg * 1024))
        def x(tb):
            R.append(lambda: k.ds(("X", ks, tb), "ds_read_b128 %s, %s offset:%d", v(XB + st * 20 + tb * 4, 4), vv("xb1" if kk else "xb0"), (c % 4) * 10240 + tb * 2048))
        w(1, 0); w(1, 1); x(0); w(2, 0); w(2, 1); x(1); w(0, 0); w(0, 1); x(2); x(3); x(4)
        return R
    order = [("K", 0), ("V", 0), ("K", 1), ("V", 1), ("Q", 1), ("K", 2), ("V", 2), ("Q", 2), ("K", 3), ("V", 3), ("Q", 3), ("K", 4), ("V", 4), ("Q", 4)]
    k.vw("X0")
    k.e("s_barrier")
    k.stamp(1)
    for r_ in reads(0): r_()
    for ks in range(16):
        c, kk, st = ks >> 1, ks & 1, ks & 1
        fill = []
        if kk == 1:
            k.lg0()
            if c == 1: k.vw("X1")
            elif 2 <= c <= 6: k.vw("W%d" % (c + 1))
            k.e("s_barrier")
            if c == 2: p1_stats(k)
            if c == 3:
                k.e("v_add_u32 %s, 40960, %s", vv("xb0"), vv("xb0"))
                k.e("v_add_u32 %s, 40960, %s", vv("xb1"), vv("xb1"))
        nxt = reads(ks + 1) if ks < 15 else []
        dma = []
        if kk == 1 and c <= 4: dma = p1_wdma(k, c + 3, c % 3, "W%d" % (c + 3))
        if ks == 15:
            k.e("s_lshl_b32 %s, %s, 18", ss("t4"), ss("kh"))
            k.e("s_lshl_b32 %s, %s, 16", ss("t5"), ss("th"))
            k.e("s_add_u32 %s, %s, %s", ss("t4"), ss("t4"), ss("t5"))
            for cc in range(2):
                dma += g_wdma(k, "WO", cc, lambda p, cc=cc: k.e("s_add_u32 %s, %s, 0x%x", ss("t3"), ss("t4"), (128 * cc + 16 * p) * 1024), "W2")
            k.e("v_and_b32 v%d, 15, %s", XB, vv("lane"))
            k.e("v_lshlrev_b32 v%d, 3, v%d", XB, XB)
            k.e("v_add_u32 v%d, 0x%x, v%d", XB, P1ST, XB)
            k.e("v_and_b32 v%d, 48, %s", XB + 1, vv("lane"))
            k.e("v_add_u32 v%d, 0x%x, v%d", XB + 1, P1ST + 640, XB + 1)
            for tb in range(5):
                nxt.append(lambda tb=tb: k.ds("sa", "ds_read_b64 %s, v%d offset:%d", v(SA + 2 * tb, 2), XB, tb * 128))
            for tb in range(5):
                nxt.append(lambda tb=tb: k.ds("sb", "ds_read_b128 %s, v%d offset:%d", v(SB + 4 * tb, 4), XB + 1, tb * 64))
                nxt.append(lambda tb=tb: k.ds("sb", "ds_read_b128 %s, v%d offset:%d", v(SB + 20 + 4 * tb, 4), XB + 1, 320 + tb * 64))
        for i, (m, tb) in enumerate(order):
            seg = {"Q": 0, "K": 1, "V": 2}[m]
            k.lg(("W", ks, seg), ("X", ks, tb))
            wr = v(WB + st * 12 + seg * 4, 4); xr = v(XB + st * 20 + tb * 4, 4)
            acc = v({"Q": AQ - 4, "K": AK, "V": AV}[m] + 4 * tb, 4)
            cin = "0" if ks == 0 else acc
            if m == "V": k.e("v_mfma_f32_16x16x32_bf16 %s, %s, %s, %s", acc, xr, wr, cin)
            else: k.e("v_mfma_f32_16x16x32_bf16 %s, %s, %s, %s", acc, wr, xr, cin)
            if nxt: nxt.pop(0)()
            if ks == 15 and nxt: nxt.pop(0)()
            if dma and (i % 2 == 1 or ks == 15): dma.pop(0)()
        while nxt: nxt.pop(0)()
        while dma: dma.pop(0)()
        Lc = k.newlabel("L_cs")
        k.e("s_cmp_lg_u32 %s, 0", ss("pass"))
        k.e("s_cbranch_scc1 %s", Lc)
        for nm, seg in (("csQ", 0), ("csK", 1), ("csV", 2)):
            wr = v(WB + st * 12 + seg * 4, 4); cin = "0" if ks == 0 else vv(nm, 4)
            if nm == "csV": k.e("v_mfma_f32_16x16x32_bf16 %s, %s, %s, %s", vv(nm, 4), vv("ones", 4), wr, cin)
            else: k.e("v_mfma_f32_16x16x32_bf16 %s, %s, %s, %s", vv(nm, 4), wr, vv("ones", 4), cin)
        if ks == 15: k.e("s_nop 7")
        k.label(Lc)

def p1_epi(k):
    k.stamp(2)
    KP, QP, VP = XB + 4, XB + 14, XB + 22
    SP = WB - 8
    assert SP == XB + 32
    k.lg("sa")
    k.e("s_nop 3")
    def pkfma_b(acc, cs, mr):
        k.e("v_pk_fma_f32 %s, %s, %s, %s op_sel_hi:[1,0,1] neg_lo:[0,1,0] neg_hi:[0,1,0]", v(acc, 2), v(cs, 2), v(mr, 2), v(acc, 2))
    for tb in range(5):
        for h in range(2): pkfma_b(AK + 4 * tb + 2 * h, V["csK"] + 2 * h, SA + 2 * tb)
        for h in range(2): k.e("v_pk_mul_f32 %s, %s, %s op_sel:[0,1] op_sel_hi:[1,1]", v(AK + 4 * tb + 2 * h, 2), v(AK + 4 * tb + 2 * h, 2), v(SA + 2 * tb, 2))
        for h in range(2): k.e("v_cvt_pk_bf16_f32 v%d, v%d, v%d", KP + 2 * tb + h, AK + 4 * tb + 2 * h, AK + 4 * tb + 2 * h + 1)
    for tb in range(1, 5):
        q = AQ + 4 * (tb - 1)
        for h in range(2): pkfma_b(q + 2 * h, V["csQ"] + 2 * h, SA + 2 * tb)
        for h in range(2): k.e("v_cvt_pk_bf16_f32 v%d, v%d, v%d", QP + 2 * (tb - 1) + h, q + 2 * h, q + 2 * h + 1)
    k.e("s_nop 1")
    for tb in range(1, 5):
        k.e("v_mfma_f32_16x16x16_bf16 %s, %s, %s, 0", v(SP + 8 * (tb - 1), 4), v(KP + 2 * (tb - 1), 2), v(QP + 2 * (tb - 1), 2))
        k.e("v_mfma_f32_16x16x16_bf16 %s, %s, %s, 0", v(SP + 8 * (tb - 1) + 4, 4), v(KP + 2 * tb, 2), v(QP + 2 * (tb - 1), 2))
    k.lg("sb")
    for tb in range(5):
        for h in range(2):
            acc = AV + 4 * tb + 2 * h
            k.e("v_pk_fma_f32 %s, %s, %s, %s op_sel_hi:[1,0,1] neg_lo:[0,1,0] neg_hi:[0,1,0]", v(acc, 2), v(SB + 4 * tb + 2 * h, 2), vv("csV", 2), v(acc, 2))
        for h in range(2):
            acc = AV + 4 * tb + 2 * h
            k.e("v_pk_mul_f32 %s, %s, %s", v(acc, 2), v(acc, 2), v(SB + 20 + 4 * tb + 2 * h, 2))
        for h in range(2): k.e("v_cvt_pk_bf16_f32 v%d, v%d, v%d", VP + 2 * tb + h, AV + 4 * tb + 2 * h, AV + 4 * tb + 2 * h + 1)
    Lf = k.newlabel("L_ft")
    k.e("s_cmp_lg_u32 %s, 0", ss("m64"))
    k.e("s_cbranch_scc1 %s", Lf)
    for i in range(4): k.e("v_mov_b32 v%d, 0x%x", SP + i, f32(-1e30))
    k.label(Lf)
    T = AQ
    c_ = [T + i for i in range(4)]
    s0 = [T + 4 + i for i in range(4)]; s1 = [T + 8 + i for i in range(4)]
    mx = [T + 12 + i for i in range(4)]; tm = [T + 16 + i for i in range(4)]
    for b in range(4): k.e("v_mul_f32 v%d, 0x%x, v%d", c_[b], f32(0.25 * 1.4426950408889634), SA + 2 * (b + 1) + 1)
    for b in range(4):
        P_, O_ = SP + 8 * b, SP + 8 * b + 4
        k.e("v_cndmask_b32 v%d, v%d, v%d, %s", P_, P_, P_ + 1, sp("par"))
        k.e("v_cndmask_b32 v%d, v%d, v%d, %s", P_ + 2, P_ + 2, P_ + 3, sp("par"))
        k.e("v_cndmask_b32 v%d, v%d, v%d, %s", O_, O_, O_ + 1, sp("par"))
        k.e("v_cndmask_b32 v%d, v%d, v%d, %s", O_ + 2, O_ + 2, O_ + 3, sp("par"))
        k.e("v_cndmask_b32 v%d, v%d, v%d, %s", s0[b], P_, O_, sp("own0"))
        k.e("v_cndmask_b32 v%d, v%d, v%d, %s", s1[b], P_ + 2, O_ + 2, sp("own1"))
        k.e("v_max_f32 v%d, v%d, v%d", mx[b], s0[b], s1[b])
    red_g(k, mx, tm, "v_max_f32")
    for b in range(4): k.e("v_mul_f32 v%d, v%d, v%d", mx[b], mx[b], c_[b])
    for b in range(4):
        k.e("v_fma_f32 v%d, v%d, v%d, -v%d", s0[b], s0[b], c_[b], mx[b])
        k.e("v_fma_f32 v%d, v%d, v%d, -v%d", s1[b], s1[b], c_[b], mx[b])
    for b in range(4):
        k.e("v_exp_f32 v%d, v%d", s0[b], s0[b])
        k.e("v_exp_f32 v%d, v%d", s1[b], s1[b])
    for b in range(4): k.e("v_add_f32 v%d, v%d, v%d", mx[b], s0[b], s1[b])
    red_g(k, mx, tm)
    for b in range(4): k.e("v_rcp_f32 v%d, v%d", mx[b], mx[b])
    for b in range(4):
        k.e("v_mul_f32 v%d, v%d, v%d", s0[b], s0[b], mx[b])
        k.e("v_mul_f32 v%d, v%d, v%d", s1[b], s1[b], mx[b])
    for b in range(4):
        P_ = SP + 8 * b
        k.e("v_cvt_pk_bf16_f32 v%d, v%d, v%d", s0[b], s0[b], s0[b])
        k.e("v_cvt_pk_bf16_f32 v%d, v%d, v%d", s1[b], s1[b], s1[b])
        k.e("v_and_b32 v%d, v%d, %s", P_, s0[b], vv("mP0"))
        k.e("v_and_b32 v%d, v%d, %s", P_ + 1, s1[b], vv("mP1"))
        k.e("v_and_b32 v%d, v%d, %s", P_ + 2, s0[b], vv("mO0"))
        k.e("v_and_b32 v%d, v%d, %s", P_ + 3, s1[b], vv("mO1"))
    k.e("s_nop 1")
    for b in range(4):
        k.e("v_mfma_f32_16x16x32_bf16 %s, %s, %s, 0", v(SP + 8 * b + 4, 4), v(VP + 2 * b, 4), v(SP + 8 * b, 4))
    k.e("s_lshl_b32 %s, %s, 21", ss("t2"), ss("pass"))
    k.e("s_lshl_b32 %s, %s, 16", ss("t3"), ss("m64"))
    k.e("s_add_u32 %s, %s, %s", ss("t2"), ss("t2"), ss("t3"))
    k.e("s_lshl_b32 %s, %s, 2", ss("t3"), ss("c8"))
    k.e("s_add_u32 %s, %s, %s", ss("t3"), ss("t3"), ss("w"))
    k.e("s_lshl_b32 %s, %s, 9", ss("t3"), ss("t3"))
    k.e("s_add_u32 %s, %s, %s", ss("t2"), ss("t2"), ss("t3"))
    k.e("s_add_u32 %s, %s, 0x%x", ss("t2"), ss("t2"), O_OFF)
    k.e("s_add_u32 %s, %s, 0x8000", ss("t3"), ss("t2"))
    OP = T + 20
    for b in range(4):
        for h in range(2): k.e("v_cvt_pk_bf16_f32 v%d, v%d, v%d", OP + 2 * b + h, SP + 8 * b + 4 + 2 * h, SP + 8 * b + 5 + 2 * h)
    k.e("s_nop 1")
    for pr in range(2):
        k.e("v_permlane16_swap_b32 v%d, v%d", OP + 4 * pr, OP + 4 * pr + 2)
        k.e("v_permlane16_swap_b32 v%d, v%d", OP + 4 * pr + 1, OP + 4 * pr + 3)
    k.vm("so", "buffer_store_dwordx4 %s, %s, %s, %s offen sc1", v(OP, 4), vv("vo"), sr("WS"), ss("t2"))
    k.vm("so", "buffer_store_dwordx4 %s, %s, %s, %s offen sc1", v(OP + 4, 4), vv("vo"), sr("WS"), ss("t3"))

def unpack_res(k, acc):
    for i in range(8):
        k.e("v_lshlrev_b32 v%d, 16, %s", acc + 2 * i, vv("res", 1, i))
        k.e("v_and_b32 v%d, 0xffff0000, %s", acc + 2 * i + 1, vv("res", 1, i))

def p0(k):
    L = k.newlabel("L_p0")
    k.e("s_cmp_lg_u32 %s, 0", ss("pass"))
    k.e("s_cbranch_scc1 %s", L)
    k.e("s_cmp_ge_u32 %s, 224", ss("item"))
    k.e("s_cbranch_scc1 %s", L)
    T = W0 + 40
    k.e("s_lshl_b32 %s, %s, 12", ss("t2"), ss("w"))
    k.e("s_add_u32 %s, %s, 0x%x", ss("t2"), ss("t2"), P0L)
    k.e("v_add_u32 v%d, %s, %s", T, ss("t2"), vv("l16"))
    for j in range(4): k.ds("p0w", "ds_write_b128 v%d, %s offset:%d", T, vv("raw", 4, 4 * j), j * 1024)
    k.e("v_lshrrev_b32 v%d, 4, %s", T + 1, vv("lane"))
    k.e("v_bfe_u32 v%d, %s, 2, 2", T + 2, vv("lane"))
    k.e("v_lshl_add_u32 v%d, v%d, 3, v%d", T + 2, T + 1, T + 2)
    k.e("v_lshlrev_b32 v%d, 7, v%d", T + 2, T + 2)
    k.e("v_and_b32 v%d, 1, %s", T + 3, vv("lane"))
    k.e("v_lshl_add_u32 v%d, v%d, 4, v%d", T + 2, T + 3, T + 2)
    k.e("v_bfe_u32 v%d, %s, 1, 1", T + 3, vv("lane"))
    k.e("v_lshl_add_u32 v%d, v%d, 3, v%d", T + 2, T + 3, T + 2)
    k.e("s_lshl_b32 %s, %s, 5", ss("t2"), ss("w"))
    k.e("s_add_u32 %s, %s, 0x%x", ss("t2"), ss("t2"), P0L)
    k.e("v_add_u32 v%d, %s, v%d", T + 2, ss("t2"), T + 2)
    k.e("s_cmp_ge_u32 %s, 112", ss("item"))
    k.e("s_cselect_b32 %s, 1, 0", ss("t4"))
    k.e("s_mul_i32 %s, %s, 112", ss("t2"), ss("t4"))
    k.e("s_sub_u32 %s, %s, %s", ss("t2"), ss("item"), ss("t2"))
    k.e("s_and_b32 %s, %s, 3", ss("t5"), ss("t2"))
    k.e("s_and_b32 %s, %s, 0xfc", ss("t2"), ss("t2"))
    k.e("s_add_u32 %s, %s, %s", ss("t3"), ss("t2"), ss("w"))
    k.e("v_and_b32 v%d, 15, %s", T + 3, vv("lane"))
    k.e("s_lshl_b32 %s, %s, 4", ss("t4"), ss("t4"))
    k.e("v_add_u32 v%d, %s, v%d", T + 3, ss("t4"), T + 3)
    k.e("v_and_b32 v%d, 1, v%d", T + 4, T + 1)
    k.e("v_lshl_add_u32 v%d, v%d, 5, v%d", T + 4, T + 4, T + 3)
    k.e("v_lshlrev_b32 v%d, 4, v%d", T + 4, T + 4)
    k.e("v_lshrrev_b32 v%d, 1, v%d", T + 1, T + 1)
    k.e("v_lshl_add_u32 v%d, v%d, 10, v%d", T + 4, T + 1, T + 4)
    k.e("v_lshlrev_b32 v%d, 4, v%d", T + 3, T + 3)
    k.lg0()
    k.e("s_barrier")
    F = T + 8
    for q in range(4):
        for qq in range(2):
            k.ds(("p0", q), "ds_read_b64_tr_b16 %s, v%d offset:%d", v(F + 4 * q + 2 * qq, 2), T + 2, q * 4096 + qq * 512)
    k.e("s_lshl_b32 %s, %s, 15", ss("t4"), ss("t3"))
    k.e("s_lshl_b32 %s, %s, 13", ss("spin"), ss("t5"))
    k.e("s_add_u32 %s, %s, %s", ss("t4"), ss("t4"), ss("spin"))
    k.e("s_add_u32 %s, %s, 0x%x", ss("t4"), ss("t4"), WP_OFF)
    C = F + 16
    for q in range(4):
        k.lg(("p0", q))
        k.e("v_mfma_f32_16x16x32_bf16 %s, %s, %s, %s", v(C, 4), vv("ones", 4), v(F + 4 * q, 4), "0" if q == 0 else v(C, 4))
        k.vm("p0s", "buffer_store_dwordx4 %s, v%d, %s, %s offen offset:%d sc1", v(F + 4 * q, 4), T + 4, sr("WS"), ss("t4"), (q & 1) * 2048)
        if q == 1: k.e("s_add_u32 %s, %s, 4096", ss("t4"), ss("t4"))
    k.e("s_lshl_b32 %s, %s, 10", ss("t4"), ss("t3"))
    k.e("s_lshr_b32 %s, %s, 1", ss("spin"), ss("t5"))
    k.e("s_lshl_b32 %s, %s, 9", ss("spin"), ss("spin"))
    k.e("s_add_u32 %s, %s, %s", ss("t4"), ss("t4"), ss("spin"))
    k.e("s_and_b32 %s, %s, 1", ss("spin"), ss("t5"))
    k.e("s_lshl_b32 %s, %s, 3", ss("spin"), ss("spin"))
    k.e("s_add_u32 %s, %s, %s", ss("t4"), ss("t4"), ss("spin"))
    k.e("s_add_u32 %s, %s, 0x%x", ss("t4"), ss("t4"), AUG_OFF)
    k.e("v_cvt_pk_bf16_f32 v%d, v%d, %s", C + 5, C, vv("zero"))
    k.e("v_lshlrev_b32 v%d, 16, v%d", C + 6, C + 5)
    k.e("v_sub_f32 v%d, v%d, v%d", C + 6, C, C + 6)
    k.e("v_cvt_pk_bf16_f32 v%d, v%d, v%d", C + 4, C, C + 6)
    k.e("s_mov_b64 exec, 0xffff")
    k.vm("p0s", "buffer_store_dwordx2 %s, v%d, %s, %s offen sc1", v(C + 4, 2), T + 3, sr("WS"), ss("t4"))
    k.e("s_mov_b64 exec, -1")
    k.vw0()
    k.e("s_barrier")
    k.e("s_lshr_b32 %s, %s, 2", ss("t5"), ss("t2"))
    signal(k, lambda: cnt_off(k, CR, ss("t5")))
    k.label(L)

GA0, GA1, GWB, GT = W0, W0 + 16, W0 + 32, W0 + 64
def gemm64(k, nch, slot, hooks, pre_reads_done=False):
    N = nch * 8
    def reads(n):
        c, i = n >> 3, n & 7; sl = slot(c)
        b0, b1 = ("gwr0h", "gwr1h") if sl >= 2 else ("gwr0", "gwr1")
        off = (sl & 1) * 32768 + i * 2048
        R = []
        for j, b in enumerate((b0, b1)):
            for q in range(2):
                R.append(lambda j=j, b=b, q=q: k.ds(("G", n, j), "ds_read_b64_tr_b16 %s, %s offset:%d", v(GWB + (n % 4) * 8 + j * 4 + 2 * q, 2), vv(b), off + q * 512))
        return R
    if not pre_reads_done:
        for n in range(3):
            for r_ in reads(n): r_()
    fill = []
    for n in range(N):
        c, i = n >> 3, n & 7
        nxt = []
        if hooks.get("barriers"):
            if i <= 4: nxt = reads(n + 3)
            elif i == 6 and c + 1 < nch:
                k.lg0()
                if hooks.get(("pre", c + 1)): hooks[("pre", c + 1)]()
                k.e("s_barrier")
                if hooks.get(c + 1): fill = hooks[c + 1]()
                nxt = reads(n + 2) + reads(n + 3)
            elif i == 7 and c + 1 < nch: nxt = reads(n + 3)
        elif n + 3 < N: nxt = reads(n + 3)
        k.vw(("GX", c, i))
        for j in range(2):
            k.lg(("G", n, j))
            acc = v((GA0, GA1)[j], 16)
            cin = "0" if (n == 0 and j == 1) else acc
            k.e("v_mfma_f32_32x32x16_bf16 %s, %s, %s, %s", acc, v(GWB + (n % 4) * 8 + j * 4, 4), a(n * 4, 4), cin)
            for _ in range((len(nxt) + 1 - j) // (2 - j) if j == 0 else len(nxt)): nxt.pop(0)()
            if fill: fill.pop(0)()
    while fill: fill.pop(0)()
    return reads

def g_epi(k, st_off_emit, srd, vaddr, s0, s1):
    T = GT
    k.e("s_lshl_b32 %s, %s, 12", ss("t2"), ss("w"))
    k.e("s_add_u32 %s, %s, 0x%x", ss("t2"), ss("t2"), AUX)
    k.e("v_add_u32 v%d, %s, %s", T, ss("t2"), vv("l16"))
    k.e("s_xor_b32 %s, %s, 0x2000", ss("t2"), ss("t2"))
    k.e("v_add_u32 v%d, %s, %s", T + 1, ss("t2"), vv("l16"))
    st_off_emit()
    k.e("s_nop 4")
    for q in range(4): k.ds("rw", "ds_write_b128 v%d, %s offset:%d", T, v(GA1 + 4 * q, 4), q * 1024)
    k.lg0()
    k.e("s_barrier")
    for q in range(4): k.ds(("rr", q), "ds_read_b128 %s, v%d offset:%d", v(GA1 + 4 * q, 4), T + 1, q * 1024)
    for q in range(4):
        k.lg(("rr", q))
        for h in range(2): k.e("v_pk_add_f32 %s, %s, %s", v(GA0 + 4 * q + 2 * h, 2), v(GA0 + 4 * q + 2 * h, 2), v(GA1 + 4 * q + 2 * h, 2))
        for h in range(2): k.e("v_cvt_pk_bf16_f32 %s, v%d, v%d", vv("res", 1, 2 * q + h), GA0 + 4 * q + 2 * h, GA0 + 4 * q + 2 * h + 1)
        if q == 1: k.vm("sx", "buffer_store_dwordx4 %s, %s, %s, %s offen sc1", vv("res", 4), vaddr, sr(srd), s0)
        if q == 3: k.vm("sx", "buffer_store_dwordx4 %s, %s, %s, %s offen sc1", vv("res", 4, 4), vaddr, sr(srd), s1)
    for i in range(4): k.e("v_mov_b32 v%d, 0", T + 2 + i)
    for i in range(8):
        k.e("v_dot2c_f32_bf16 v%d, %s, %s", T + 2 + 2 * (i & 1), vv("res", 1, i), vv("ones"))
        k.e("v_dot2c_f32_bf16 v%d, %s, %s", T + 3 + 2 * (i & 1), vv("res", 1, i), vv("res", 1, i))
    k.e("s_nop 2")
    k.e("v_add_f32 v%d, v%d, v%d", T + 2, T + 2, T + 4)
    k.e("v_add_f32 v%d, v%d, v%d", T + 3, T + 3, T + 5)
    k.e("v_mov_b32 v%d, v%d", T + 4, T + 2)
    k.e("v_mov_b32 v%d, v%d", T + 5, T + 3)
    k.e("s_nop 1")
    k.e("v_permlane32_swap_b32 v%d, v%d", T + 2, T + 4)
    k.e("v_permlane32_swap_b32 v%d, v%d", T + 3, T + 5)
    k.e("s_nop 0")
    k.e("v_add_f32 v%d, v%d, v%d", T + 2, T + 2, T + 4)
    k.e("v_add_f32 v%d, v%d, v%d", T + 3, T + 3, T + 5)
    k.e("s_mov_b64 exec, 0xffffffff")
    k.vm("sx", "buffer_store_dwordx2 %s, %s, %s, %s offen sc1", v(T + 2, 2), vv("st32"), sr("WS"), ss("t5"))
    k.e("s_mov_b64 exec, -1")

def st_off(k, base_emit):
    k.e("s_lshl_b32 %s, %s, 1", ss("t4"), ss("c8"))
    k.e("s_add_u32 %s, %s, %s", ss("t4"), ss("t4"), ss("kh"))
    k.e("s_lshl_b32 %s, %s, 14", ss("t4"), ss("t4"))
    k.e("s_lshl_b32 %s, %s, 1", ss("t5"), ss("m64"))
    k.e("s_add_u32 %s, %s, %s", ss("t5"), ss("t5"), ss("th"))
    k.e("s_lshl_b32 %s, %s, 8", ss("t5"), ss("t5"))
    k.e("s_add_u32 %s, %s, %s", ss("t5"), ss("t5"), ss("t4"))
    base_emit()

def frag_tile_off(k, dst):
    k.e("s_lshl_b32 %s, %s, 1", ss(dst), ss("m64"))
    k.e("s_add_u32 %s, %s, %s", ss(dst), ss(dst), ss("th"))
    k.e("s_lshl_b32 %s, %s, 15", ss(dst), ss(dst))
    k.e("s_lshl_b32 %s, %s, 1", ss("t3"), ss("c8"))
    k.e("s_add_u32 %s, %s, %s", ss("t3"), ss("t3"), ss("kh"))
    k.e("s_lshl_b32 %s, %s, 10", ss("t3"), ss("t3"))
    k.e("s_add_u32 %s, %s, %s", ss(dst), ss(dst), ss("t3"))

def row_tile_off(k, dst):
    k.e("s_lshl_b32 %s, %s, 1", ss(dst), ss("m64"))
    k.e("s_add_u32 %s, %s, %s", ss(dst), ss(dst), ss("th"))
    k.e("s_lshl_b32 %s, %s, 15", ss(dst), ss(dst))
    k.e("s_lshl_b32 %s, %s, 1", ss("t3"), ss("c8"))
    k.e("s_add_u32 %s, %s, %s", ss("t3"), ss("t3"), ss("kh"))
    k.e("s_lshl_b32 %s, %s, 6", ss("t3"), ss("t3"))
    k.e("s_add_u32 %s, %s, %s", ss(dst), ss(dst), ss("t3"))

def p2(k):
    k.vw0()
    Lz = k.newlabel("L_zp"); Lzl = k.newlabel("L_zpl")
    k.e("s_or_b32 %s, %s, %s", ss("t2"), ss("pass"), ss("w"))
    k.e("s_cmp_lg_u32 %s, 0", ss("t2"))
    k.e("s_cbranch_scc1 %s", Lz)
    k.e("s_mov_b32 %s, 0", ss("spin"))
    k.label(Lzl)
    k.e("v_cmp_ne_u32 vcc, 1, %s", vv("pb"))
    k.e("s_cbranch_vccz %s", Lz)
    k.e("buffer_load_dword %s, %s, %s, 0 offen sc1", vv("pb"), vv("zero"), sr("DBG"))
    k.e("s_waitcnt vmcnt(0)")
    k.e("s_add_u32 %s, %s, 1", ss("spin"), ss("spin"))
    k.e("s_cmp_lt_u32 %s, 0x4000", ss("spin"))
    k.e("s_cbranch_scc1 %s", Lzl)
    k.label(Lz)
    k.e("s_barrier")
    signal(k, lambda: cnt_off(k, CA, ss("m64"), 32))
    k.stamp(3)
    if k.o.get("stop") == 1: k.e("s_branch L_fin")
    p0(k)
    unpack_res(k, GA0)
    rd_holder = {}
    def pl():
        cnt_off(k, CA, ss("m64"), 32)
        k.e("v_mov_b32 %s, %s", vv("pa"), ss("t2"))
        poll_spin(k, 1, 8, 0x101)
    k.e("s_lshl_b32 %s, %s, 21", ss("t4"), ss("pass"))
    k.e("s_lshl_b32 %s, %s, 1", ss("t5"), ss("m64"))
    k.e("s_add_u32 %s, %s, %s", ss("t5"), ss("t5"), ss("th"))
    k.e("s_lshl_b32 %s, %s, 15", ss("t5"), ss("t5"))
    k.e("s_add_u32 %s, %s, %s", ss("t4"), ss("t4"), ss("t5"))
    k.e("s_lshl_b32 %s, %s, 13", ss("t5"), ss("kh"))
    k.e("s_add_u32 %s, %s, %s", ss("t4"), ss("t4"), ss("t5"))
    k.e("s_add_u32 %s, %s, 0x%x", ss("t4"), ss("t4"), O_OFF)
    k.e("s_add_u32 %s, %s, 4096", ss("t5"), ss("t4"))
    wave1(k, pl)
    k.e("s_barrier")
    k.stamp(4)
    for n in range(16):
        k.vm(("GX", n >> 3, n & 7), "buffer_load_dwordx4 %s, %s, %s, %s offen offset:%d sc1", a(n * 4, 4), vv("xf64"), sr("WS"), ss("t5" if n >= 8 else "t4"), (n & 7) * 512)
    def rp():
        Lr = k.newlabel("L_rp")
        k.e("s_cmp_lg_u32 %s, 0", ss("pass"))
        k.e("s_cbranch_scc1 %s", Lr)
        k.e("s_mul_i32 %s, %s, 7", ss("t2"), ss("s16"))
        k.e("s_add_u32 %s, %s, 6", ss("t3"), ss("t2"))
        k.e("s_lshr_b32 %s, %s, 2", ss("t2"), ss("t2"))
        k.e("s_lshr_b32 %s, %s, 2", ss("t3"), ss("t3"))
        k.e("v_add_u32 %s, %s, %s", vv("pa"), ss("t2"), vv("lane"))
        k.e("v_min_u32 %s, %s, %s", vv("pa"), ss("t3"), vv("pa"))
        k.e("v_add_u32 %s, %d, %s", vv("pa"), CR, vv("pa"))
        k.e("v_lshlrev_b32 %s, 7, %s", vv("pa"), vv("pa"))
        poll_issue(k, 3)
        k.label(Lr)
    wave1(k, rp)
    gemm64(k, 2, lambda c: c, {})
    k.stamp(5)
    def rc():
        Lr = k.newlabel("L_rc")
        k.e("s_cmp_lg_u32 %s, 0", ss("pass"))
        k.e("s_cbranch_scc1 %s", Lr)
        poll_spin(k, 3, 8, 0x102, first_wait=0)
        k.label(Lr)
    wave1(k, rc)
    frag_tile_off(k, "out0")
    k.e("s_lshl_b32 %s, %s, 21", ss("t3"), ss("pass"))
    k.e("s_add_u32 %s, %s, %s", ss("out0"), ss("out0"), ss("t3"))
    k.e("s_add_u32 %s, %s, 0x%x", ss("out0"), ss("out0"), X1_OFF)
    k.e("s_add_u32 %s, %s, 512", ss("out1"), ss("out0"))
    def sb():
        k.e("s_lshl_b32 %s, %s, 18", ss("t4"), ss("pass"))
        k.e("s_add_u32 %s, %s, %s", ss("t5"), ss("t5"), ss("t4"))
        k.e("s_add_u32 %s, %s, 0x%x", ss("t5"), ss("t5"), ST1_OFF)
    g_epi(k, lambda: st_off(k, sb), "WS", vv("xf64"), ss("out0"), ss("out1"))
    k.vw0()
    k.e("s_barrier")
    signal(k, lambda: cnt_off(k, CB, ss("m64"), 32))
    k.stamp(6)

PA, PS, PW, PAW, PAX, PC, PT = W0, W0 + 16, W0 + 32, W0 + 64, W0 + 68, W0 + 72, W0 + 76
def rf_dma(k, tag):
    out = []
    for p in range(4):
        def l0(p=p):
            k.e("s_add_u32 m0, %s, %d", ss("prev"), p * 2048)
            if p: k.e("s_add_u32 %s, %s, %s", ss("t3"), ss("t3"), ss("rfp"))
            else: k.e("s_mov_b32 %s, %s", ss("t3"), ss("rfs"))
            k.vm(tag, "buffer_load_dwordx4 %s, %s, %s offen sc1 lds", vv("rfA"), sr("RF"), ss("t3"))
        def l1(p=p):
            k.vm(tag, "buffer_load_dwordx4 %s, %s, %s offen offset:1024 sc1 lds", vv("rfB"), sr("RF"), ss("t3"))
            if p == 3: k.e("s_add_u32 %s, %s, %s", ss("rfs"), ss("rfs"), ss("rfc"))
        out += [l0, l1]
    return out

def p3_epi_ops(k, pk=False):
    ops = []
    E = lambda fmt, *a_: ops.append(lambda: k.e(fmt, *a_))
    ca, cb, ve = PC, PC + 1, PC + 2
    t = PT
    H = PT + 8
    for half in range(2):
        js = range(4 * half, 4 * half + 4)
        for j in js: E("v_mul_f32 v%d, v%d, v%d", t + j, PS + j, PS + j)
        for j in js: E("v_fma_f32 v%d, v%d, v%d, v%d", t + j, t + j, cb, ca)
        for j in js: E("v_mul_f32 v%d, v%d, v%d", t + j, t + j, PS + j)
        for j in js:
            E("v_exp_f32 v%d, v%d", t + j, t + j)
            E("v_mul_f32 v%d, v%d, v%d", PS + j, PS + j, PS + 8 + j)
        for j in js: E("v_fma_f32 v%d, v%d, v%d, v%d", t + j, t + j, ve, ve)
        for j in js: E("v_rcp_f32 v%d, v%d", t + j, t + j)
        for j in js: E("v_mul_f32 v%d, v%d, v%d", PS + j, PS + j, t + j)
        for j in (0, 2): E("v_cvt_pk_bf16_f32 v%d, v%d, v%d", H + 2 * half + j // 2, PS + 4 * half + j, PS + 4 * half + j + 1)
    def st():
        k.vm("S", "buffer_store_dwordx4 %s, %s, %s, %s offen sc1", v(H, 4), vv("xf224"), sr("WS"), ss("hst"))
        k.e("s_add_u32 %s, %s, 512", ss("hst"), ss("hst"))
    ops.append(st)
    return ops

def p3_block(k, first):
    def rd(i, nxt=False):
        k.ds(("P", i + (32 if nxt else 0)), "ds_read_b128 %s, %s offset:%d", v(PW + (i % 8) * 4, 4), vv("wnxt" if nxt else "wcur"), i * 1024)
    fill = []
    dma = []
    if first:
        ops = []
        E = lambda fmt, *a_: ops.append(lambda: k.e(fmt, *a_))
        L = PT + 16
        for j in range(2):
            for i in (2, 4, 6, 8, 10, 12, 14): E("v_add_f32 v%d, v%d, v%d", L + j, L + j, L + i + j)
        E("v_mov_b32 v%d, v%d", L + 2, L); E("v_mov_b32 v%d, v%d", L + 3, L + 1); E("s_nop 1")
        E("v_permlane32_swap_b32 v%d, v%d", L, L + 2); E("v_permlane32_swap_b32 v%d, v%d", L + 1, L + 3); E("s_nop 0")
        E("v_add_f32 v%d, v%d, v%d", L, L, L + 2); E("v_add_f32 v%d, v%d, v%d", L + 1, L + 1, L + 3)
        mean, rstd, ve = L + 4, L + 5, PC + 2
        E("v_mul_f32 v%d, 0x%x, v%d", mean, f32(-1 / 512), L)
        E("v_mul_f32 v%d, v%d, v%d", ve, mean, mean)
        E("v_mov_b32 v%d, 0x%x", rstd, f32(1 / 512))
        E("v_fma_f32 v%d, v%d, v%d, -v%d", ve, L + 1, rstd, ve)
        E("v_max_f32 v%d, 0, v%d", ve, ve)
        E("v_add_f32 v%d, 0x%x, v%d", ve, f32(1e-5), ve)
        E("v_rsq_f32 v%d, v%d", rstd, ve)
        E("v_cvt_pk_bf16_f32 v%d, v%d, v%d", PAX, mean, mean)
        E("v_and_b32 v%d, 0xffff0000, v%d", L + 6, PAX)
        E("v_mul_f32 v%d, 0x%x, v%d", PC, f32(-2 * 0.7978845608028654 * 1.4426950408889634), rstd)
        E("v_sub_f32 v%d, v%d, v%d", L + 6, mean, L + 6)
        E("v_mul_f32 v%d, v%d, v%d", L + 7, rstd, rstd)
        E("v_cvt_pk_bf16_f32 v%d, v%d, %s", PAX + 1, L + 6, vv("zero"))
        E("v_mul_f32 v%d, 0x%x, v%d", L + 7, f32(0.044715), L + 7)
        E("v_mov_b32 v%d, v%d", PAX + 2, PAX)
        E("v_mul_f32 v%d, v%d, v%d", PC + 1, PC, L + 7)
        E("v_mov_b32 v%d, v%d", PAX + 3, PAX + 1)
        fill = ops
        for i in range(6): rd(i)
    else:
        fill = p3_epi_ops(k)
        dma = rf_dma(k, "D")
    nf = len(fill)
    for i in range(33):
        if i == 28:
            k.lg0()
            if first: pass
            else: k.e("s_waitcnt vmcnt(9)")
            k.e("s_barrier")
            if not first:
                Ls = k.newlabel("L_sc")
                k.e("s_cmp_lg_u32 %s, 5", ss("b"))
                k.e("s_cbranch_scc1 %s", Ls)
                signal(k, lambda: cnt_off(k, CC, ss("M128"), 16))
                k.label(Ls)
        if i < 32:
            if first: k.vw(("PX", i))
            k.lg(("P", i))
            k.e("v_mfma_f32_32x32x16_bf16 %s, %s, %s, %s", v(PA, 16), v(PW + (i % 8) * 4, 4), a(i * 4, 4), "0" if i == 0 else v(PA, 16))
        else:
            k.lg("aug")
            k.e("v_mfma_f32_32x32x16_bf16 %s, %s, %s, %s", v(PS, 16), v(PAW, 4), v(PAX, 4), v(PA, 16))
        if i <= 25: rd(i + 6)
        if i == 26: k.ds("aug", "ds_read_b128 %s, %s", v(PAW, 4), vv("augr"))
        if i in (28, 29): rd(2 * (i - 28), True); rd(2 * (i - 28) + 1, True)
        if i in (30, 31): rd(i - 26, True)
        if dma and i < 8: dma.pop(0)()
        lo = 1 if first else 5
        if lo <= i <= 26:
            want = -(-nf * (i - lo + 1) // (26 - lo + 1))
            while nf - len(fill) < want and fill: fill.pop(0)()
    assert not fill and not dma
    k.e("s_add_u32 %s, %s, %s", ss("prev"), ss("cur"), ss("gwm"))
    k.e("s_add_u32 %s, %s, 0x8000", ss("cur"), ss("cur"))
    k.e("s_and_b32 %s, %s, 0x1ffff", ss("cur"), ss("cur"))
    k.e("s_add_u32 %s, %s, 0x8000", ss("t2"), ss("cur"))
    k.e("s_and_b32 %s, %s, 0x1ffff", ss("t2"), ss("t2"))
    k.e("v_mov_b32 %s, %s", vv("wcur"), vv("wnxt"))
    k.e("v_add_u32 %s, %s, %s", vv("wnxt"), ss("t2"), vv("l16"))
    k.e("v_add_u32 %s, 1024, %s", vv("augr"), vv("augr"))
    k.lgq = [("P", t[1] - 32) if isinstance(t, tuple) and t[0] == "P" else t for t in k.lgq]

def p3(k):
    for i in range(4): k.e("s_mov_b32 s%d, s%d", S["RF"] + i, S["WS"] + i)
    k.e("s_mov_b32 s%d, 0x20000", S["RF"] + 3)
    k.e("v_mov_b32 %s, %s", vv("rfA"), vv("l16"))
    k.e("v_mov_b32 %s, %s", vv("rfB"), vv("l16"))
    k.e("s_mul_i32 %s, %s, %d", ss("rfs"), ss("s16"), 7 * 32768)
    k.e("s_add_u32 %s, %s, %s", ss("rfs"), ss("rfs"), ss("gwm"))
    k.e("s_add_u32 %s, %s, 0x%x", ss("rfs"), ss("rfs"), WP_OFF)
    k.e("s_mov_b32 %s, 2048", ss("rfp"))
    k.e("s_mov_b32 %s, 32768", ss("rfc"))
    for c in range(2):
        k.e("s_add_u32 %s, %s, 0x%x", ss("prev"), ss("gwm"), (2 + c) * 32768)
        for d in rf_dma(k, "Dp"): d()
    k.e("s_mul_i32 %s, %s, 7", ss("t3"), ss("s16"))
    k.e("s_add_u32 %s, %s, %s", ss("t3"), ss("t3"), ss("w"))
    k.e("s_lshl_b32 %s, %s, 10", ss("t3"), ss("t3"))
    k.e("s_add_u32 %s, %s, 0x%x", ss("t3"), ss("t3"), AUG_OFF)
    k.e("s_lshl_b32 %s, %s, 10", ss("t2"), ss("w"))
    k.e("s_add_u32 m0, %s, 0x%x", ss("t2"), AUGL)
    k.e("s_add_u32 %s, %s, 4096", ss("t4"), ss("t3"))
    k.vm("Dp", "buffer_load_dwordx4 %s, %s, %s offen sc1 lds", vv("l16"), sr("WS"), ss("t3"))
    k.e("s_add_u32 m0, %s, 0x%x", ss("t2"), AUGL + 4096)
    k.e("s_cmp_eq_u32 %s, 3", ss("w"))
    k.e("s_cselect_b32 %s, 0x%x, %s", ss("t4"), OOB, ss("t4"))
    k.vm("Dp", "buffer_load_dwordx4 %s, %s, %s offen sc1 lds", vv("l16"), sr("WS"), ss("t4"))
    k.e("s_mov_b32 %s, 0x10000", ss("cur"))
    k.e("v_add_u32 %s, 0x10000, %s", vv("wcur"), vv("l16"))
    k.e("v_add_u32 %s, 0x18000, %s", vv("wnxt"), vv("l16"))
    k.e("v_add_u32 %s, 0x%x, %s", vv("augr"), AUGL, vv("l16"))
    k.e("s_lshl_b32 %s, %s, 2", ss("t2"), ss("M128"))
    k.e("s_add_u32 %s, %s, %s", ss("t2"), ss("t2"), ss("w"))
    k.e("s_mul_i32 %s, %s, %d", ss("hst"), ss("t2"), 2 * 57344)
    k.e("s_mul_i32 %s, %s, %d", ss("t3"), ss("s16"), 7 * 512)
    k.e("s_add_u32 %s, %s, %s", ss("hst"), ss("hst"), ss("t3"))
    k.e("s_lshl_b32 %s, %s, 23", ss("t3"), ss("pass"))
    k.e("s_add_u32 %s, %s, %s", ss("hst"), ss("hst"), ss("t3"))
    k.e("s_add_u32 %s, %s, 0x%x", ss("hst"), ss("hst"), H_OFF)
    k.e("s_lshl_b32 %s, %s, 15", ss("t4"), ss("t2"))
    k.e("s_lshl_b32 %s, %s, 21", ss("t3"), ss("pass"))
    k.e("s_add_u32 %s, %s, %s", ss("t4"), ss("t4"), ss("t3"))
    k.e("s_add_u32 %s, %s, 0x%x", ss("t4"), ss("t4"), X1_OFF)
    k.e("s_lshl_b32 %s, %s, 8", ss("t5"), ss("t2"))
    k.e("s_lshl_b32 %s, %s, 18", ss("t3"), ss("pass"))
    k.e("s_add_u32 %s, %s, %s", ss("t5"), ss("t5"), ss("t3"))
    k.e("s_add_u32 %s, %s, 0x%x", ss("t5"), ss("t5"), ST1_OFF)
    def pl():
        k.e("s_lshl_b32 %s, %s, 1", ss("t3"), ss("M128"))
        cnt_off(k, CB, ss("t3"), 32)
        k.e("s_add_u32 %s, %s, 128", ss("t3"), ss("t2"))
        pa_two(k, ss("t2"), ss("t3"))
        poll_spin(k, 2, 8, 0x103)
    wave1(k, pl)
    k.vw0()
    k.e("s_barrier")
    k.stamp(7)
    for i in range(8):
        k.vm("stl", "buffer_load_dwordx2 %s, %s, %s, %s offen sc1", v(PT + 16 + 2 * i, 2), vv("st3"), sr("WS"), ss("t5"))
        if i < 7: k.e("s_add_u32 %s, %s, 16384", ss("t5"), ss("t5"))
    for i in range(32):
        if i and i % 8 == 0: k.e("s_add_u32 %s, %s, 4096", ss("t4"), ss("t4"))
        k.vm(("PX", i), "buffer_load_dwordx4 %s, %s, %s, %s offen offset:%d sc1", a(i * 4, 4), vv("xf64"), sr("WS"), ss("t4"), (i & 7) * 512)
    for c in range(2):
        k.e("s_add_u32 %s, %s, 0x%x", ss("prev"), ss("gwm"), c * 32768)
        for d in rf_dma(k, "Dp"): d()
    p3_block(k, True)
    k.stamp(8)
    entry_lgq = list(k.lgq)
    k.e("s_mov_b32 %s, 1", ss("b"))
    k.label("L_p3loop")
    Lsw = k.newlabel("L_sw")
    k.e("s_cmp_lg_u32 %s, 4", ss("b"))
    k.e("s_cbranch_scc1 %s", Lsw)
    for i in range(3): k.e("s_mov_b32 s%d, s%d", S["RF"] + i, S["WD"] + i)
    k.e("v_mov_b32 %s, %s", vv("rfA"), vv("gwdA"))
    k.e("v_mov_b32 %s, %s", vv("rfB"), vv("gwdB"))
    k.e("s_mul_i32 %s, %s, %d", ss("rfs"), ss("w"), 4 * 112 * 1024)
    k.e("s_mov_b32 %s, %d", ss("rfp"), 112 * 1024)
    k.e("s_mov_b32 %s, 16384", ss("rfc"))
    k.label(Lsw)
    p3_block(k, False)
    if not k.o.get("stamps"): assert k.lgq == entry_lgq, (k.lgq, entry_lgq)
    k.e("s_add_u32 %s, %s, 1", ss("b"), ss("b"))
    k.e("s_cmp_lt_u32 %s, 7", ss("b"))
    k.e("s_cbranch_scc1 L_p3loop")
    k.vmq = ["D"] * 8 + ["S"]
    k.stamp(9)
    for d in rf_dma(k, "W3"): d()
    k.e("s_nop 1")
    for o in p3_epi_ops(k): o()

def p4(k):
    k.lg0()
    unpack_res(k, GA0)
    k.e("s_lshl_b32 %s, %s, 1", ss("t2"), ss("m64"))
    k.e("s_add_u32 %s, %s, %s", ss("t2"), ss("t2"), ss("th"))
    k.e("s_mul_i32 %s, %s, %d", ss("t2"), ss("t2"), 2 * 57344)
    k.e("s_mul_i32 %s, %s, 28672", ss("t3"), ss("kh"))
    k.e("s_add_u32 %s, %s, %s", ss("t2"), ss("t2"), ss("t3"))
    k.e("s_lshl_b32 %s, %s, 23", ss("t3"), ss("pass"))
    k.e("s_add_u32 %s, %s, %s", ss("t2"), ss("t2"), ss("t3"))
    XO = [8, 9, 10, 11, 12, 13, 14, 15]
    k.e("s_add_u32 s%d, %s, 0x%x", XO[0], ss("t2"), H_OFF)
    for i in range(1, 8): k.e("s_add_u32 s%d, s%d, 3584", XO[i], XO[i - 1])
    def pl():
        cnt_off(k, CC, ss("M128"), 16)
        k.e("v_mov_b32 %s, %s", vv("pa"), ss("t2"))
        poll_spin(k, 1, 16, 0x104)
    wave1(k, pl)
    k.e("s_barrier")
    k.stamp(10)
    def xl(c, i):
        k.vm(("GX", c, i), "buffer_load_dwordx4 %s, %s, %s, s%d offen offset:%d sc1", a((c * 8 + i) * 4, 4), vv("xf224"), sr("WS"), XO[i], c * 512)
    for c in range(4):
        for i in range(8): xl(c, i)
    slot = lambda c: (c + 1) % 4
    k.e("s_mul_i32 %s, %s, %d", ss("t4"), ss("w"), 4 * 112 * 1024)
    def wd(c):
        return g_wdma(k, "WD", slot(c), lambda p: k.e("s_add_u32 %s, %s, 0x%x", ss("t3"), ss("t4"), (112 * p + 16 * c) * 1024), "W%d" % c)
    def h1():
        signal(k, lambda: cnt_off(k, CD, ss("M128"), 16))
        return wd(4)
    def h2():
        def b_():
            cnt_off(k, CD, ss("M128"), 16)
            k.e("v_mov_b32 %s, %s", vv("pa"), ss("t2"))
            poll_issue(k, 1)
        wave1(k, b_)
        k.vmark("pollD")
        return wd(5)
    def pre3():
        n = k.vcount("pollD")
        wave1(k, lambda: poll_spin(k, 1, 16, 0x105, first_wait=n))
    def h3():
        for c in (4, 5, 6):
            for i in range(8): xl(c, i)
        return wd(6)
    hooks = {"barriers": True, 1: h1, 2: h2, ("pre", 3): pre3, 3: h3,
             ("pre", 4): lambda: k.vw("W4"), ("pre", 5): lambda: k.vw("W5"), ("pre", 6): lambda: k.vw("W6")}
    gemm64(k, 7, slot, hooks)
    k.stamp(11)
    La = k.newlabel("L_o1"); Lb = k.newlabel("L_o2")
    k.e("s_cmp_lg_u32 %s, 0", ss("pass"))
    k.e("s_cbranch_scc1 %s", La)
    frag_tile_off(k, "out0")
    k.e("s_add_u32 %s, %s, 512", ss("out1"), ss("out0"))
    k.e("s_branch %s", Lb)
    k.label(La)
    row_tile_off(k, "out0")
    k.e("s_add_u32 %s, %s, 32", ss("out1"), ss("out0"))
    k.label(Lb)
    g_epi(k, lambda: st_off(k, lambda: k.e("s_add_u32 %s, %s, 0x%x", ss("t5"), ss("t5"), ST2_OFF)), "OUT", vv("vout"), ss("out0"), ss("out1"))

def build_kernel(opts):
    k = K(opts)
    k("; @launch grid=(256,1,1) block=(256,1,1) lds=163840")
    k('.amdgcn_target "amdgcn-amd-amdhsa--gfx950"')
    kernel_header(k, NAME + "_kernel")
    f = setup(k)
    k.stamp(0)
    Lz = k.newlabel("L_zero")
    k.e("s_or_b32 %s, %s, %s", ss("t2"), ss("item"), ss("w"))
    k.e("s_cmp_lg_u32 %s, 0", ss("t2"))
    k.e("s_cbranch_scc1 %s", Lz)
    k.e("v_lshlrev_b32 v%d, 7, %s", f[10], vv("lane"))
    k.e("s_mov_b32 %s, 0", ss("t2"))
    for j in range(4):
        k.e("buffer_store_dword %s, v%d, %s, %s offen sc1", vv("zero"), f[10], sr("WS"), ss("t2"))
        k.e("s_add_u32 %s, %s, 8192", ss("t2"), ss("t2"))
    k.label(Lz)
    for c in range(3):
        for d in p1_wdma(k, c, c, "W%d" % c): d()
    k.e("s_mov_b32 %s, 8192", ss("sH"))
    k.e("s_mov_b32 %s, 128", ss("sC"))
    p1_xsetup(k)
    p1_xdma(k)
    t16, g, t32, hh, u, p16, r, c, x, y, z = f
    k.e("s_cmp_ge_u32 %s, 112", ss("item"))
    k.e("s_cselect_b32 s%d, s14, s12", S["RF"])
    k.e("s_cselect_b32 s%d, s15, s13", S["RF"] + 1)
    k.e("s_cselect_b32 %s, 112, 0", ss("t2"))
    k.e("s_and_b32 s%d, s%d, 0xffff", S["RF"] + 1, S["RF"] + 1)
    k.e("s_mov_b32 s%d, 0x%x", S["RF"] + 2, 512 * 1792 * 2)
    k.e("s_mov_b32 s%d, 0x20000", S["RF"] + 3)
    k.e("s_sub_u32 %s, %s, %s", ss("t2"), ss("item"), ss("t2"))
    k.e("s_and_b32 %s, %s, 3", ss("t3"), ss("t2"))
    k.e("s_lshl_b32 %s, %s, 2", ss("t3"), ss("t3"))
    k.e("s_add_u32 %s, %s, %s", ss("t3"), ss("t3"), ss("w"))
    k.e("s_mul_i32 %s, %s, %d", ss("t3"), ss("t3"), 32 * 3584)
    k.e("s_lshr_b32 %s, %s, 2", ss("t2"), ss("t2"))
    k.e("s_lshl_b32 %s, %s, 7", ss("t2"), ss("t2"))
    k.e("s_add_u32 %s, %s, %s", ss("t3"), ss("t3"), ss("t2"))
    k.e("s_cmp_ge_u32 %s, 224", ss("item"))
    k.e("s_cselect_b32 %s, 0x%x, %s", ss("t3"), OOB, ss("t3"))
    k.e("v_mul_u32_u24 v%d, 3584, v%d", x, u)
    k.e("v_lshl_add_u32 v%d, v%d, 4, v%d", x, p16, x)
    for j in range(4):
        k.vm("E", "buffer_load_dwordx4 %s, v%d, %s, %s offen", vv("raw", 4, 4 * j), x, sr("RF"), ss("t3"))
        if j < 3: k.e("s_add_u32 %s, %s, %d", ss("t3"), ss("t3"), 8 * 3584)
    row_tile_off(k, "t4")
    k.e("v_lshlrev_b32 v%d, 10, v%d", y, t32)
    k.e("v_lshl_add_u32 v%d, v%d, 4, v%d", y, hh, y)
    k.vm("E", "buffer_load_dwordx4 %s, v%d, %s, %s offen", vv("res", 4), y, sr("XS"), ss("t4"))
    k.vm("E", "buffer_load_dwordx4 %s, v%d, %s, %s offen offset:32", vv("res", 4, 4), y, sr("XS"), ss("t4"))
    Lz = k.newlabel("L_zero")
    k.e("s_or_b32 %s, %s, %s", ss("t2"), ss("item"), ss("w"))
    k.e("s_cmp_lg_u32 %s, 0", ss("t2"))
    k.e("s_cbranch_scc1 %s", Lz)
    k.e("s_waitcnt vmcnt(%d)", len(k.vmq))
    k.e("buffer_store_dword %s, %s, %s, 0 offen sc1", vv("one"), vv("zero"), sr("DBG"))
    k.label(Lz)
    k.vm("E", "buffer_load_dword %s, %s, %s, 0 offen sc1", vv("pb"), vv("zero"), sr("DBG"))
    k.vm("E", "buffer_load_dword %s, %s, %s, 0 offen sc1", vv("pb"), vv("zero"), sr("DBG"))
    setup2(k, f)
    vmq_entry = list(k.vmq)
    k.label("L_p1")
    p1_main(k)
    p1_epi(k)
    p2(k)
    if opts.get("stop") == 2: k.e("s_branch L_fin")
    p3(k)
    if opts.get("stop") == 3: k.e("s_branch L_fin")
    p4(k)
    k.e("s_cmp_lg_u32 %s, 0", ss("pass"))
    k.e("s_cbranch_scc1 L_fin")
    k.vw0()
    k.e("s_barrier")
    signal(k, lambda: cnt_off(k, CE, ss("m64")))
    k.stamp(12)
    if opts.get("stop") == 4: k.e("s_branch L_fin")
    for c in range(3):
        for d in p1_wdma(k, c, c, "W%d" % c): d()
    k.e("s_mov_b32 %s, 1", ss("pass"))
    k.e("s_mov_b32 %s, 16", ss("stb"))
    mk_srd(k, "XS", 22, 2 * MB, add=X2_OFF)
    mk_srd(k, "OUT", 18, 2 * MB)
    k.e("v_mov_b32 %s, %s", vv("p1xd"), vv("l16"))
    k.e("v_mov_b32 %s, %s", vv("xb0"), vv("l16"))
    k.e("v_add_u32 %s, 1024, %s", vv("xb1"), vv("l16"))
    k.e("v_and_b32 v%d, 31, %s", W0, vv("lane"))
    k.e("v_lshrrev_b32 v%d, 5, %s", W0 + 1, vv("lane"))
    k.e("v_lshlrev_b32 v%d, 10, v%d", W0, W0)
    k.e("v_lshl_add_u32 %s, v%d, 4, v%d", vv("vout"), W0 + 1, W0)
    k.e("s_mov_b32 %s, 1024", ss("sH"))
    k.e("s_mov_b32 %s, 2048", ss("sC"))
    p1_xsetup(k)
    k.e("s_lshl_b32 %s, %s, 9", ss("t5"), ss("m64"))
    k.e("s_add_u32 %s, %s, 0x%x", ss("t5"), ss("t5"), ST2_OFF - 128)
    k.e("s_lshl_b32 %s, %s, 7", ss("t4"), ss("w"))
    k.e("s_add_u32 %s, %s, %s", ss("t4"), ss("t4"), ss("t5"))
    k.e("s_add_u32 %s, %s, 128", ss("t4"), ss("t4"))
    def pl():
        cnt_off(k, CE, ss("m64"))
        k.e("s_sub_u32 %s, %s, 128", ss("t3"), ss("t2"))
        k.e("s_cmp_eq_u32 %s, 0", ss("m64"))
        k.e("s_cselect_b32 %s, %s, %s", ss("t3"), ss("t2"), ss("t3"))
        pa_two(k, ss("t2"), ss("t3"))
        poll_spin(k, 2, 8, 0x106)
    wave1(k, pl)
    k.e("s_barrier")
    k.stamp(0)
    p1_xdma(k)
    for blk, sreg in ((0, "t4"), (1, "t5")):
        for i in range(4):
            k.vm("E", "buffer_load_dwordx2 %s, %s, %s, %s offen sc1", v(STL + 8 * blk + 2 * i, 2), vv("st1"), sr("WS"), ss(sreg))
            if i < 3: k.e("s_add_u32 %s, %s, 0x10000", ss(sreg), ss(sreg))
    assert k.vmq == vmq_entry, (k.vmq, vmq_entry)
    k.e("s_branch L_p1")
    k.label("L_fin")
    if opts.get("stamps"):
        k.stamp(13)
        k.e("s_lshl_b32 %s, s2, 2", ss("t2"))
        k.e("s_add_u32 %s, %s, %s", ss("t2"), ss("t2"), ss("w"))
        k.e("s_lshl_b32 %s, %s, 8", ss("t2"), ss("t2"))
        k.e("s_add_u32 %s, %s, 0x%x", ss("t2"), ss("t2"), STAMP_OFF)
        k.e("v_lshlrev_b32 v%d, 2, %s", W0, vv("lane"))
        k.e("buffer_store_dword %s, v%d, %s, %s offen", vv("stamp"), W0, sr("WS"), ss("t2"))
    k.label("L_end")
    k.e("s_endpgm")
    kernel_desc(k, NAME + "_kernel", vgpr=512, sgpr=102, accum=256)
    return k.text()

if __name__ == "__main__":
    opts = {}
    out = "k.s"
    for arg in sys.argv[1:]:
        if arg.startswith("-o"): out = arg[2:]
        elif "=" in arg:
            a_, b_ = arg.split("="); opts[a_] = int(b_)
        else: opts[arg] = 1
    t = build_kernel(opts)
    open(out, "w").write(t)
    errs = hazard.check(t)
    print("\n".join(errs) if errs else "hazard check clean")
    from build import build
    co = build(out, NAME + "_kernel")
    import subprocess
    r = subprocess.run("llvm-objdump -h %s | grep text" % co, shell=True, capture_output=True, text=True)
    print(r.stdout.strip())
```
